```python
import torch

def _softmax(x, axis=-1):
    return torch.softmax(x, dim=axis)

def _gelu(x):
    return torch.nn.functional.gelu(x, approximate='tanh')

def _silu(x):
    return torch.nn.functional.silu(x)

def _sigmoid(x):
    return torch.sigmoid(x)

def _layernorm(x, axis=-1, eps=1e-05):
    m = x.mean(dim=axis, keepdim=True)
    v = x.var(dim=axis, keepdim=True, unbiased=False)
    return (x - m) / torch.sqrt(v + eps)

def _scatter_add(tgt, idx, src, axis=0):
    return tgt.clone().index_add_(axis, idx, src)

def _segment_sum(src, seg, n):
    out = torch.zeros((n,) + src.shape[1:], dtype=src.dtype)
    return out.index_add_(0, seg, src)

def _pad(x, pw):
    flat = tuple((v for pair in reversed(pw) for v in pair))
    return torch.nn.functional.pad(x, flat)
kernel_name = 'interleave_layers__sliding_block__memory_aug_recurrent_mem_tr__prompt'

def setup_inputs():

    _w = lambda a: (lambda t: t.to(torch.bfloat16) if t.is_floating_point() else t)(torch.as_tensor(a))

    def _A_setup():
        B, S, D = (1, 2048, 448)
        return {'x': _w((lambda *s: torch.randn(*s, dtype=torch.bfloat16) * 0.05)(B, S, D)), 'wqkv': _w((lambda *s: torch.randn(*s, dtype=torch.bfloat16) * 0.05)(D, 3 * D)), 'wo': _w((lambda *s: torch.randn(*s, dtype=torch.bfloat16) * 0.05)(D, D))}
    _A_in = _A_setup()

    def _B_setup():
        B, S, Dm = (1, 2048, 448)
        H, Dh = (16, 256)
        M, seg = (8, 32)
        seg = min(seg, S)
        S = S // seg * seg
        return {'x': _w((lambda *s: torch.randn(*s, dtype=torch.bfloat16) * 0.05)(B, S, Dm)), 'mem0': _w((lambda *s: torch.randn(*s, dtype=torch.bfloat16) * 0.8)(B, M, Dm)), 'Wq': _w((lambda *s: torch.randn(*s, dtype=torch.bfloat16) * 1.6)(Dm, H, Dh) * Dm ** (-0.5)), 'Wk': _w((lambda *s: torch.randn(*s, dtype=torch.bfloat16) * 1.6)(Dm, H, Dh) * Dm ** (-0.5)), 'Wv': _w((lambda *s: torch.randn(*s, dtype=torch.bfloat16) * 0.8)(Dm, H, Dh) * Dm ** (-0.5)), 'Wo': _w((lambda *s: torch.randn(*s, dtype=torch.bfloat16) * 0.8)(H, Dh, Dm) * (H * Dh) ** (-0.5)), 'seg_len': seg}
    _B_in = _B_setup()
    return {'A_x': _A_in['x'], 'A_wqkv': _A_in['wqkv'], 'A_wo': _A_in['wo'], 'B_x': _B_in['x'], 'B_mem0': _B_in['mem0'], 'B_Wq': _B_in['Wq'], 'B_Wk': _B_in['Wk'], 'B_Wv': _B_in['Wv'], 'B_Wo': _B_in['Wo'], 'B_seg_len': _B_in['seg_len']}

def reference(A_x, A_wqkv, A_wo, B_x, B_mem0, B_Wq, B_Wk, B_Wv, B_Wo, B_seg_len):

    def _A_ref(x, wqkv, wo):
        B, S, D = x.shape
        H = 16
        Dh = D // H
        W = 256
        qkv = (lambda x, *d: x.permute(*d))((x @ wqkv).reshape(B, S, 3, H, Dh), 2, 0, 3, 1, 4)
        q, k, v = (qkv[0], qkv[1], qkv[2])
        scores = torch.einsum('bhqd,bhkd->bhqk', q, k) * Dh ** (-0.5)
        idx = torch.arange(S)
        mask = (idx[:, None] - idx[None, :] >= 0) & (idx[:, None] - idx[None, :] < W)
        scores = torch.where(mask[None, None], scores, -1000000000.0)
        p = _softmax(scores, axis=-1)
        o = torch.einsum('bhqk,bhkd->bhqd', p, v)
        return (lambda x, *d: x.permute(*d))(o, 0, 2, 1, 3).reshape(B, S, D) @ wo

    def _B_ref(x, mem0, Wq, Wk, Wv, Wo, seg_len):
        B, S, Dm = x.shape
        H, Dh = (Wq.shape[1], Wq.shape[2])
        M = mem0.shape[1]
        scale = Dh ** (-0.5)
        n_seg = S // seg_len
        L = M + seg_len
        idx = torch.arange(L)
        mask = (idx[:, None] < M) | (idx[:, None] >= idx[None, :])
        mem = mem0
        outs = []
        for s in range(n_seg):
            xs = x[:, s * seg_len:(s + 1) * seg_len, :].clone()
            h = torch.concatenate([mem, xs], axis=1)
            q = torch.einsum('btd,dhe->bhte', h, Wq)
            k = torch.einsum('btd,dhe->bhte', h, Wk)
            v = torch.einsum('btd,dhe->bhte', h, Wv)
            scores = torch.einsum('bhqe,bhke->bhqk', q, k) * scale
            scores = torch.where(mask[None, None], scores, -1000000000.0)
            p = _softmax(scores, axis=-1)
            o = torch.einsum('bhqk,bhke->bhqe', p, v)
            o = torch.einsum('bhte,hed->btd', o, Wo)
            mem = o[:, :M, :].clone()
            outs.append(o[:, M:, :])
        return torch.concatenate(outs, axis=1)
    x = A_x
    x = x + _A_ref(_layernorm(x, axis=-1), A_wqkv, A_wo)
    x = x + _B_ref(_layernorm(x, axis=-1), B_mem0, B_Wq, B_Wk, B_Wv, B_Wo, B_seg_len)
    x = x + _A_ref(_layernorm(x, axis=-1), A_wqkv, A_wo)
    x = x + _B_ref(_layernorm(x, axis=-1), B_mem0, B_Wq, B_Wk, B_Wv, B_Wo, B_seg_len)
    return x
```

```python
class Kern:
    def __init__(self, name):
        self.name = name
        self.lines = []
        self.nlab = 0
    def __call__(self, s):
        for l in s.strip().split('\n'):
            l = l.strip()
            if l:
                self.lines.append('    ' + l)
    def lab(self, base='L'):
        self.nlab += 1
        return f"{self.name}_{base}{self.nlab}"
    def label(self, l):
        self.lines.append(l + ':')
    def text(self, vgpr, sgpr=102, accum=None, agpr=0):
        out = []
        out.append('.text')
        out.append(f'.globl {self.name}')
        out.append('.p2align 8')
        out.append(f'.type {self.name},@function')
        out.append(f'{self.name}:')
        out += self.lines
        out.append('    s_endpgm')
        if accum is None:
            accum = (vgpr + 3) // 4 * 4
        nfv = accum + agpr if agpr else vgpr
        desc = []
        desc.append('.section .rodata,"a"')
        desc.append('.p2align 6')
        desc.append(f'.amdhsa_kernel {self.name}')
        desc.append(f'  .amdhsa_next_free_vgpr {nfv}')
        desc.append(f'  .amdhsa_next_free_sgpr {sgpr}')
        desc.append(f'  .amdhsa_accum_offset {accum}')
        desc.append('  .amdhsa_group_segment_fixed_size 0')
        desc.append('  .amdhsa_kernarg_size 104')
        desc.append('  .amdhsa_user_sgpr_count 2')
        desc.append('  .amdhsa_user_sgpr_kernarg_segment_ptr 1')
        desc.append('  .amdhsa_system_sgpr_workgroup_id_x 1')
        desc.append('.end_amdhsa_kernel')
        return '\n'.join(out) + '\n', '\n'.join(desc) + '\n'

def vr(a, n=1):
    return f"v{a}" if n == 1 else f"v[{a}:{a+n-1}]"
def ar(a, n=1):
    return f"a{a}" if n == 1 else f"a[{a}:{a+n-1}]"
def sr(a, n=1):
    return f"s{a}" if n == 1 else f"s[{a}:{a+n-1}]"

P_AX, P_WQKV, P_WO_A, P_BX, P_MEM0, P_WQ, P_WK, P_WV, P_WO_B, P_SEG, P_OUT, P_DBG, P_WS = [16 + 2 * i for i in range(13)]

def load_args(k):
    k("""
    s_load_dwordx16 s[16:31], s[0:1], 0
    s_load_dwordx8 s[32:39], s[0:1], 64
    s_load_dwordx2 s[40:41], s[0:1], 96
    """)

def srd(k, d, p, nbytes):
    k(f"""
    s_mov_b32 s{d}, s{p}
    s_mov_b32 s{d+1}, s{p+1}
    s_mov_b32 s{d+2}, {nbytes}
    s_mov_b32 s{d+3}, 0x00020000
    """)
```

```python
from asm import *
import layout as L
import math
BIG = 0x7FFFFF00
def f32hex(x):
    import struct
    return "0x%08x" % struct.unpack('<I', struct.pack('<f', x))[0]

def std_prologue(k, nwg, done):
    k(f"s_cmp_ge_u32 s2, {nwg}")
    k(f"s_cbranch_scc1 {done}")
    load_args(k)
    k("""
    v_lshrrev_b32 v1, 6, v0
    v_and_b32 v62, 63, v0          ; lane
    s_nop 0
    v_readfirstlane_b32 s3, v1     ; wave
    v_and_b32 v2, 31, v62          ; m / n
    v_lshrrev_b32 v3, 5, v62       ; hi
    v_lshlrev_b32 v5, 4, v62       ; lane*16
    s_waitcnt lgkmcnt(0)
    """)
    srd(k, 44, P_WS, L.WS_BYTES)

def gen_ka1():
    k = Kern("ka1_kernel")
    NWG = 384
    done = "ka1_kernel_done"
    std_prologue(k, NWG, done)
    k(f"""
    s_and_b32 s4, s2, 31           ; rp
    s_lshr_b32 s5, s2, 5
    s_lshl_b32 s5, s5, 2
    s_add_u32 s5, s5, s3           ; ct 0..47
    s_mul_i32 s6, s4, 57344
    s_add_u32 s6, s6, {L.XN}
    s_add_u32 s7, s6, 28672
    s_mul_i32 s8, s5, 28672
    s_add_u32 s8, s8, {L.WAF}
    v_mov_b32 v6, v5
    """)
    for ks in range(28):
        if ks % 4 == 0 and ks:
            k("v_add_u32 v6, 4096, v6")
        k(f"buffer_load_dwordx4 v[{64+4*ks}:{67+4*ks}], v6, s[44:47], s8 offen offset:{(ks%4)*1024}")
    for t in range(2):
        k("v_mov_b32 v4, v5")
        for ks in range(28):
            if ks % 4 == 0 and ks:
                k("v_add_u32 v4, 4096, v4")
            k(f"buffer_load_dwordx4 a[{112*t+4*ks}:{112*t+4*ks+3}], v4, s[44:47], s{6+t} offen offset:{(ks%4)*1024}")
    for r in range(32):
        k(f"v_mov_b32 v{16+r}, 0")
    lv, le = k.lab("v"), k.lab("e")
    k(f"""
    s_cmp_ge_u32 s5, 32
    s_cbranch_scc1 {lv}
    s_waitcnt vmcnt(28)
    """)
    for t in range(2):
        if t == 1: k("s_waitcnt vmcnt(0)")
        for ks in range(28):
            k(f"v_mfma_f32_32x32x16_bf16 v[{16+16*t}:{31+16*t}], v[{64+4*ks}:{67+4*ks}], a[{112*t+4*ks}:{112*t+4*ks+3}], v[{16+16*t}:{31+16*t}]")
    k(f"""
    s_lshl_b32 s9, s4, 17
    s_lshl_b32 s10, s5, 11
    s_add_u32 s9, s9, s10
    s_add_u32 s9, s9, {L.QKA}
    s_add_u32 s10, s9, 65536
    s_branch {le}
    """)
    k.label(lv)
    k("s_waitcnt vmcnt(28)")
    for t in range(2):
        if t == 1: k("s_waitcnt vmcnt(0)")
        for ks in range(28):
            k(f"v_mfma_f32_32x32x16_bf16 v[{16+16*t}:{31+16*t}], a[{112*t+4*ks}:{112*t+4*ks+3}], v[{64+4*ks}:{67+4*ks}], v[{16+16*t}:{31+16*t}]")
    k(f"""
    s_lshl_b32 s9, s4, 16
    s_sub_u32 s10, s5, 32
    s_lshl_b32 s10, s10, 11
    s_add_u32 s9, s9, s10
    s_add_u32 s9, s9, {L.VA}
    s_add_u32 s10, s9, 32768
    """)
    k.label(le)
    k("s_nop 15\ns_nop 3")
    for t in range(2):
        for i in range(8):
            k(f"v_cvt_pk_bf16_f32 v{48+8*t+i}, v{16+16*t+2*i}, v{17+16*t+2*i}")
        k(f"""
        buffer_store_dwordx4 v[{48+8*t}:{51+8*t}], v5, s[44:47], s{9+t} offen
        buffer_store_dwordx4 v[{52+8*t}:{55+8*t}], v5, s[44:47], s{9+t} offen offset:1024
        """)
    k.label(done)
    return k, (NWG, 256, 0), dict(vgpr=176, accum=176, agpr=224)

def gen_ka2():
    k = Kern("ka2_kernel")
    NWG = 256
    done = "ka2_kernel_done"
    std_prologue(k, NWG, done)
    k(f"""
    s_lshr_b32 s4, s2, 2           ; qt
    s_and_b32 s5, s2, 3
    s_lshl_b32 s5, s5, 2
    s_add_u32 s5, s5, s3           ; h
    s_lshl_b32 s6, s4, 16          ; qt*65536
    s_lshl_b32 s7, s5, 11          ; h*2048
    s_add_u32 s6, s6, s7
    s_add_u32 s6, s6, {L.QKA}      ; Q base
    buffer_load_dwordx4 v[8:11], v5, s[44:47], s6 offen
    buffer_load_dwordx4 v[12:15], v5, s[44:47], s6 offen offset:1024
    s_add_u32 s8, s6, 32768
    s_lshl_b32 s9, s4, 15
    s_add_u32 s9, s9, s7
    s_add_u32 s9, s9, {L.VA}
    v_lshlrev_b32 v6, 2, v3
    v_sub_u32 v6, v2, v6
    v_mov_b32 v7, 0xff800000       ; -inf
    """)
    skips = []
    for i in range(9):
        l = k.lab("sk")
        back = 8 - i
        k(f"""
        s_cmp_lt_u32 s4, {back}
        s_cbranch_scc1 {l}
        s_sub_u32 s10, s8, {back*65536}
        s_sub_u32 s11, s9, {back*32768}
        buffer_load_dwordx4 a[{8*i}:{8*i+3}], v5, s[44:47], s10 offen
        buffer_load_dwordx4 a[{8*i+4}:{8*i+7}], v5, s[44:47], s10 offen offset:1024
        buffer_load_dwordx4 a[{72+8*i}:{72+8*i+3}], v5, s[44:47], s11 offen
        buffer_load_dwordx4 a[{72+8*i+4}:{72+8*i+7}], v5, s[44:47], s11 offen offset:1024
        """)
        k.label(l)
    for r in range(16):
        k(f"v_mov_b32 v{16+r}, 0")
    k("s_waitcnt vmcnt(0)")
    for i in range(9):
        l, l2 = k.lab("s"), k.lab("s2")
        back = 8 - i
        S = 64 + 16 * i
        k(f"""
        s_cmp_lt_u32 s4, {back}
        s_cbranch_scc1 {l}
        v_mfma_f32_32x32x16_bf16 v[{S}:{S+15}], a[{8*i}:{8*i+3}], v[8:11], 0
        v_mfma_f32_32x32x16_bf16 v[{S}:{S+15}], a[{8*i+4}:{8*i+7}], v[12:15], v[{S}:{S+15}]
        s_branch {l2}
        """)
        k.label(l)
        for r in range(16):
            k(f"v_mov_b32 v{S+r}, v7")
        k.label(l2)
    k("s_nop 15\ns_nop 3")
    for r in range(16):
        c = 8 * (r >> 2) + (r & 3)
        k(f"""
        v_cmp_le_i32 vcc, {c}, v6
        s_nop 1
        v_cndmask_b32 v{64+128+r}, v7, v{64+128+r}, vcc
        v_cndmask_b32 v{64+r}, v{64+r}, v7, vcc
        """)
    k("v_max_f32 v32, v64, v65")
    for r in range(2, 144, 2):
        k(f"v_max3_f32 v32, v32, v{64+r}, v{65+r}")
    k("""
    v_mov_b32 v33, v32
    s_nop 1
    v_permlane32_swap_b32 v32, v33
    s_nop 1
    v_max_f32 v32, v32, v33
    """)
    c = 28 ** -0.5 * math.log2(math.e)
    k(f"""
    s_mov_b32 s12, {f32hex(c)}
    v_mul_f32 v33, s12, v32
    v_mov_b32 v34, 0
    """)
    for r in range(144):
        k(f"""
        v_fma_f32 v{64+r}, v{64+r}, s12, -v33
        v_exp_f32 v{64+r}, v{64+r}
        """)
    k("s_nop 0")
    for r in range(144):
        k(f"v_add_f32 v34, v34, v{64+r}")
    for r in range(72):
        k(f"v_cvt_pk_bf16_f32 v{64+r}, v{64+2*r}, v{65+2*r}")
    k("""
    v_mov_b32 v35, v34
    s_nop 1
    v_permlane32_swap_b32 v34, v35
    s_nop 1
    v_add_f32 v34, v34, v35
    v_rcp_f32 v34, v34
    """)
    for i in range(9):
        l = k.lab("p")
        back = 8 - i
        P = 64 + 8 * i
        k(f"""
        s_cmp_lt_u32 s4, {back}
        s_cbranch_scc1 {l}
        v_mfma_f32_32x32x16_bf16 v[16:31], a[{72+8*i}:{72+8*i+3}], v[{P}:{P+3}], v[16:31]
        v_mfma_f32_32x32x16_bf16 v[16:31], a[{72+8*i+4}:{72+8*i+7}], v[{P+4}:{P+7}], v[16:31]
        """)
        k.label(l)
    k("s_nop 15\ns_nop 3")
    for r in range(16):
        k(f"v_mul_f32 v{16+r}, v{16+r}, v34")
    for i in range(8):
        k(f"v_cvt_pk_bf16_f32 v{40+i}, v{16+2*i}, v{17+2*i}")
    k(f"""
    s_lshl_b32 s9, s4, 15
    s_add_u32 s9, s9, s7
    s_add_u32 s9, s9, {L.OA}
    buffer_store_dwordx4 v[40:43], v5, s[44:47], s9 offen
    buffer_store_dwordx4 v[44:47], v5, s[44:47], s9 offen offset:1024
    """)
    k.label(done)
    return k, (NWG, 256, 0), dict(vgpr=208, accum=208, agpr=144)

def epi_res_ln(k, ntiles_max, accbase, ctiles_expr, nwaves, src_srd, src_off, dst_srd, dst_off, write_xn, tmp):
    T = tmp
    k(f"""
    v_mul_u32_u24 v{T}, 896, v2
    v_lshl_add_u32 v{T}, v3, 3, v{T}
    v_mov_b32 v{T+2}, 0
    v_mov_b32 v{T+3}, 0
    """)
    R = T + 8
    for i in range(ntiles_max):
        l = k.lab("r")
        k(f"""
        s_cmp_ge_u32 s{ctiles_expr+i}, 14
        s_cbranch_scc1 {l}
        s_lshl_b32 s13, s{ctiles_expr+i}, 6
        s_add_u32 s13, s13, s{src_off}
        """)
        for q in range(4):
            k(f"buffer_load_dwordx2 v[{R+8*i+2*q}:{R+8*i+2*q+1}], v{T}, s[{src_srd}:{src_srd+3}], s13 offen offset:{q*16}")
        k.label(l)
    k("s_waitcnt vmcnt(0)")
    for i in range(ntiles_max):
        l = k.lab("r")
        k(f"""
        s_cmp_ge_u32 s{ctiles_expr+i}, 14
        s_cbranch_scc1 {l}
        """)
        A = accbase + 16 * i
        for p in range(8):
            k(f"""
            v_cvt_pk_bf16_f32 v{T+1}, v{A+2*p}, v{A+2*p+1}
            v_lshlrev_b32 v{T+4}, 16, v{R+8*i+p}
            v_and_b32 v{T+5}, 0xffff0000, v{R+8*i+p}
            v_lshlrev_b32 v{A+2*p}, 16, v{T+1}
            v_and_b32 v{A+2*p+1}, 0xffff0000, v{T+1}
            v_add_f32 v{A+2*p}, v{A+2*p}, v{T+4}
            v_add_f32 v{A+2*p+1}, v{A+2*p+1}, v{T+5}
            v_cvt_pk_bf16_f32 v{R+8*i+p}, v{A+2*p}, v{A+2*p+1}
            v_lshlrev_b32 v{A+2*p}, 16, v{R+8*i+p}
            v_and_b32 v{A+2*p+1}, 0xffff0000, v{R+8*i+p}
            v_add_f32 v{T+2}, v{T+2}, v{A+2*p}
            v_add_f32 v{T+2}, v{T+2}, v{A+2*p+1}
            v_fmac_f32 v{T+3}, v{A+2*p}, v{A+2*p}
            v_fmac_f32 v{T+3}, v{A+2*p+1}, v{A+2*p+1}
            """)
        k(f"""
        s_lshl_b32 s13, s{ctiles_expr+i}, 6
        s_add_u32 s13, s13, s{dst_off}
        """)
        for q in range(4):
            k(f"buffer_store_dwordx2 v[{R+8*i+2*q}:{R+8*i+2*q+1}], v{T}, s[{dst_srd}:{dst_srd+3}], s13 offen offset:{q*16}")
        k.label(l)
    if not write_xn:
        return
    k(f"""
    v_lshlrev_b32 v{T+1}, 3, v62
    s_lshl_b32 s13, s3, 9
    v_add_u32 v{T+1}, s13, v{T+1}
    ds_write_b64 v{T+1}, v[{T+2}:{T+3}]
    s_waitcnt lgkmcnt(0)
    s_barrier
    v_lshlrev_b32 v{T+1}, 3, v2
    v_mov_b32 v{T+2}, 0
    v_mov_b32 v{T+3}, 0
    """)
    for w in range(nwaves):
        k(f"""
        ds_read_b64 v[{T+4}:{T+5}], v{T+1} offset:{w*512}
        ds_read_b64 v[{T+6}:{T+7}], v{T+1} offset:{w*512+256}
        s_waitcnt lgkmcnt(0)
        v_add_f32 v{T+2}, v{T+2}, v{T+4}
        v_add_f32 v{T+3}, v{T+3}, v{T+5}
        v_add_f32 v{T+2}, v{T+2}, v{T+6}
        v_add_f32 v{T+3}, v{T+3}, v{T+7}
        """)
    k(f"""
    v_mul_f32 v{T+2}, 0x3b124925, v{T+2}      ; mean
    v_mul_f32 v{T+3}, 0x3b124925, v{T+3}      ; E[x^2]
    v_fma_f32 v{T+3}, -v{T+2}, v{T+2}, v{T+3}
    v_max_f32 v{T+3}, 0, v{T+3}
    v_add_f32 v{T+3}, 0x3727c5ac, v{T+3}
    v_rsq_f32 v{T+3}, v{T+3}
    s_mul_i32 s14, s4, 28672
    s_add_u32 s14, s14, {L.XN}
    v_mul_f32 v{T+2}, v{T+2}, v{T+3}          ; mean*rstd
    v_lshlrev_b32 v{T+4}, 4, v2
    v_lshl_add_u32 v{T+4}, v3, 3, v{T+4}
    """)
    for i in range(ntiles_max):
        l = k.lab("r")
        k(f"""
        s_cmp_ge_u32 s{ctiles_expr+i}, 14
        s_cbranch_scc1 {l}
        """)
        A = accbase + 16 * i
        for p in range(8):
            k(f"""
            v_fma_f32 v{A+2*p}, v{A+2*p}, v{T+3}, -v{T+2}
            v_fma_f32 v{A+2*p+1}, v{A+2*p+1}, v{T+3}, -v{T+2}
            v_cvt_pk_bf16_f32 v{A+p}, v{A+2*p}, v{A+2*p+1}
            """)
        k(f"""
        s_lshl_b32 s13, s{ctiles_expr+i}, 11
        s_add_u32 s13, s13, s14
        """)
        for q in range(4):
            k(f"buffer_store_dwordx2 v[{A+2*q}:{A+2*q+1}], v{T+4}, s[44:47], s13 offen offset:{q*512}")
        k.label(l)

def gen_ka3(first):
    name = "ka3a_kernel" if first else "ka3b_kernel"
    k = Kern(name)
    NWG = 64
    done = name + "_done"
    std_prologue(k, NWG, done)
    k(f"""
    s_mov_b32 s4, s2
    s_lshl_b32 s6, s4, 15
    s_add_u32 s6, s6, {L.OA}
    v_mov_b32 v6, v5
    """)
    for ks in range(32):
        if ks % 4 == 0 and ks:
            k("v_add_u32 v6, 4096, v6")
        k(f"buffer_load_dwordx4 a[{4*ks}:{4*ks+3}], v6, s[44:47], s6 offen offset:{(ks%4)*1024}")
    for i in range(4):
        k(f"s_add_u32 s{52+i}, s3, {4*i}")
    for i in range(4):
        l = k.lab("t")
        k(f"""
        s_cmp_ge_u32 s{52+i}, 14
        s_cbranch_scc1 {l}
        s_lshl_b32 s7, s{52+i}, 15
        s_add_u32 s7, s7, {L.WOAF}
        v_mov_b32 v6, v5
        """)
        for ks in range(32):
            if ks % 4 == 0 and ks:
                k("v_add_u32 v6, 4096, v6")
            k(f"buffer_load_dwordx4 v[{128+4*ks}:{131+4*ks}], v6, s[44:47], s7 offen offset:{(ks%4)*1024}")
        k("s_waitcnt vmcnt(0)")
        for ks in range(32):
            c = "0" if ks == 0 else f"v[{64+16*i}:{79+16*i}]"
            k(f"v_mfma_f32_32x32x16_bf16 v[{64+16*i}:{79+16*i}], v[{128+4*ks}:{131+4*ks}], a[{4*ks}:{4*ks+3}], {c}")
        k("s_nop 7")
        k.label(l)
    k("s_nop 15\ns_nop 3")
    if first:
        srd(k, 48, P_AX, 2048 * 448 * 2)
        k("s_mul_i32 s8, s4, 28672")
        src = 48
    else:
        k(f"s_mul_i32 s8, s4, 28672\ns_add_u32 s8, s8, {L.X}")
        src = 44
    k(f"s_mul_i32 s9, s4, 28672\ns_add_u32 s9, s9, {L.X}")
    epi_res_ln(k, 4, 64, 52, 4, src, 8, 44, 9, True, 128)
    k.label(done)
    return k, (NWG, 256, 4096), dict(vgpr=256, accum=256, agpr=128)
```

```python
from asm import *
import layout as L
from k_a import std_prologue

def gen_kb1():
    k = Kern("kb1_kernel")
    NWG = 256
    done = "kb1_kernel_done"
    std_prologue(k, NWG, done)
    NB = 4
    k(f"""
    s_and_b32 s4, s2, 7            ; xcd
    s_lshr_b32 s5, s2, 3           ; idx
    s_and_b32 s6, s5, 7            ; mb
    s_lshr_b32 s5, s5, 3
    s_lshl_b32 s4, s4, 2
    s_add_u32 s4, s4, s5           ; cr 0..31
    s_mul_i32 s4, s4, 15
    s_lshl_b32 s6, s6, 3
    s_lshl_b32 s7, s3, 1
    s_add_u32 s6, s6, s7
    s_mul_i32 s7, s6, 28672
    s_add_u32 s7, s7, {L.XN}
    s_add_u32 s8, s7, 28672
    s_mul_i32 s15, s3, 7168
    """)
    def dma(tile_sreg, buf):
        k(f"""
        s_mul_i32 s9, s{tile_sreg}, 28672
        s_add_u32 s9, s9, s15
        s_add_u32 s9, s9, {L.WTF}
        s_add_u32 s10, s15, {buf*28672}
        s_mov_b32 m0, s10
        s_add_u32 s11, s9, 4096
        """)
        for i in range(4):
            k(f"buffer_load_dwordx4 v5, s[44:47], s9 offen offset:{i*1024} lds")
        k("s_add_u32 s10, s10, 4096\ns_mov_b32 m0, s10\ns_nop 0")
        for i in range(3):
            k(f"buffer_load_dwordx4 v5, s[44:47], s11 offen offset:{i*1024} lds")
    for b in range(3):
        k(f"s_add_u32 s12, s4, {b}")
        dma(12, b)
    for t in range(2):
        k("v_mov_b32 v4, v5")
        for ks in range(28):
            if ks % 4 == 0 and ks:
                k("v_add_u32 v4, 4096, v4")
            k(f"buffer_load_dwordx4 a[{112*t+4*ks}:{112*t+4*ks+3}], v4, s[44:47], s{7+t} offen offset:{(ks%4)*1024}")
    for it in range(15):
        buf = it % NB
        if it == 0:
            k("s_waitcnt vmcnt(0)")
        else:
            later = 0
            for j in (it - 3, it - 2, it - 1):
                if j >= 0: later += 4
            for j in (it + 1, it + 2):
                if j < 15: later += 7
            if it < 3:
                later = 0 if False else later
            k(f"s_waitcnt vmcnt({later})")
        k("s_barrier")
        if it + 3 < 15:
            k(f"s_add_u32 s12, s4, {it+3}")
            dma(12, (it + 3) % NB)
        k(f"""
        s_add_u32 s12, s4, {it}
        v_add_u32 v6, {buf*28672}, v5
        """)
        lv, le = k.lab("v"), k.lab("e")
        k(f"s_cmp_ge_u32 s12, 256\ns_cbranch_scc1 {lv}")
        for form in (0, 1):
            if form == 1:
                k.label(lv)
            PF = 4
            for ks in range(PF):
                k(f"ds_read_b128 v[{64+4*ks}:{67+4*ks}], v6 offset:{ks*1024}")
            for ks in range(28):
                rem = min(PF - 1, 27 - ks)
                k(f"s_waitcnt lgkmcnt({rem})")
                B = 64 + 4 * (ks % (PF + 1))
                for t in range(2):
                    c = "0" if ks == 0 else f"v[{16+16*t}:{31+16*t}]"
                    A = f"a[{112*t+4*ks}:{112*t+4*ks+3}]"
                    Bv = f"v[{B}:{B+3}]"
                    if form == 0:
                        k(f"v_mfma_f32_32x32x16_bf16 v[{16+16*t}:{31+16*t}], {Bv}, {A}, {c}")
                    else:
                        k(f"v_mfma_f32_32x32x16_bf16 v[{16+16*t}:{31+16*t}], {A}, {Bv}, {c}")
                    if t == 0 and ks + PF < 28:
                        Bn = 64 + 4 * ((ks + PF) % (PF + 1))
                        k(f"ds_read_b128 v[{Bn}:{Bn+3}], v6 offset:{(ks+PF)*1024}")
            if form == 0:
                k(f"""
                s_lshl_b32 s13, s6, 19
                s_lshl_b32 s14, s12, 11
                s_add_u32 s13, s13, s14
                s_add_u32 s13, s13, {L.QKB}
                s_add_u32 s14, s13, 524288
                s_branch {le}
                """)
            else:
                k(f"""
                s_mul_i32 s13, s6, 458752
                s_sub_u32 s14, s12, 256
                s_lshl_b32 s14, s14, 11
                s_add_u32 s13, s13, s14
                s_add_u32 s13, s13, {L.VOX}
                s_add_u32 s14, s13, 458752
                """)
        k.label(le)
        k("s_nop 7")
        for t in range(2):
            if t == 1: k("s_nop 3")
            for i in range(8):
                k(f"v_cvt_pk_bf16_f32 v{96+8*t+i}, v{16+16*t+2*i}, v{17+16*t+2*i}")
            k(f"""
            buffer_store_dwordx4 v[{96+8*t}:{99+8*t}], v5, s[44:47], s{13+t} offen
            buffer_store_dwordx4 v[{100+8*t}:{103+8*t}], v5, s[44:47], s{13+t} offen offset:1024
            """)
    k.label(done)
    return k, (NWG, 256, NB * 28672), dict(vgpr=128, accum=128, agpr=224)
```

```python
from asm import *
import layout as L
from k_a import f32hex
import math
BIG = 0x7FFFFF00
MAXPOLL = 400000

LDS_W = 0
LDS_MS = 131072
LDS_EX = 131072 + 8192
LDS_UL = LDS_EX + 12288
LDS_ROLE = LDS_UL + 8192
LDS_TOTAL = LDS_ROLE + 64

def gen_kb2(layer):
    name = f"kb2l{layer}_kernel"
    k = Kern(name)
    NWG = 256
    done = name + "_done"
    MB = L.MBOX + layer * 64 * 8192
    PB = L.PBOX + layer * 64 * 10240
    k(f"s_cmp_ge_u32 s2, {NWG}")
    k(f"s_cbranch_scc1 {done}")
    load_args(k)
    k("""
    v_lshrrev_b32 v1, 6, v0
    v_and_b32 v62, 63, v0          ; lane
    s_nop 0
    v_readfirstlane_b32 s3, v1     ; wave
    v_and_b32 v2, 15, v62          ; n / m
    v_lshrrev_b32 v3, 4, v62       ; g
    s_getreg_b32 s4, hwreg(HW_REG_XCC_ID)
    s_and_b32 s4, s4, 7
    s_waitcnt lgkmcnt(0)
    """)
    srd(k, 44, P_WS, L.WS_BYTES)
    srd(k, 48, P_DBG, 256)
    lel, lpoll, lgot = k.lab("el"), k.lab("poll"), k.lab("got")
    k(f"""
    s_cmp_lg_u32 s3, 0
    s_cbranch_scc1 {lel}
    s_mov_b64 s[6:7], exec
    s_mov_b64 exec, 1
    v_mov_b32 v8, 1
    s_lshl_b32 s5, s4, 2
    v_mov_b32 v9, s5
    buffer_atomic_add v8, v9, s[48:51], 0 offen sc0
    s_waitcnt vmcnt(0)
    v_readfirstlane_b32 s8, v8     ; r
    s_cmp_lg_u32 s8, 31
    s_cbranch_scc1 {lgot}
    s_add_u32 s5, s4, 1
    v_mov_b32 v10, s5
    v_mov_b32 v11, 0
    v_mov_b32 v9, 64
    buffer_atomic_cmpswap v[10:11], v9, s[48:51], 0 offen sc0
    s_waitcnt vmcnt(0)
    """)
    k.label(lgot)
    k(f"""
    v_mov_b32 v8, 1
    v_mov_b32 v9, 68
    buffer_atomic_add v8, v9, s[48:51], 0 offen sc0
    s_waitcnt vmcnt(0)
    v_readfirstlane_b32 s9, v8     ; g
    s_mov_b32 s12, 0
    """)
    k.label(lpoll)
    lout = k.lab("out")
    k(f"""
    v_mov_b32 v9, 68
    v_mov_b32 v8, 0
    buffer_atomic_add v8, v9, s[48:51], 0 offen sc0
    s_waitcnt vmcnt(0)
    v_mov_b32 v9, 64
    v_mov_b32 v10, 0
    buffer_atomic_add v10, v9, s[48:51], 0 offen sc0
    s_waitcnt vmcnt(0)
    v_readfirstlane_b32 s10, v10   ; winner
    v_readfirstlane_b32 s11, v8
    s_cmp_lg_u32 s10, 0
    s_cbranch_scc1 {lout}
    s_cmp_ge_u32 s11, {NWG}
    s_cbranch_scc1 {lout}
    s_add_u32 s12, s12, 1
    s_cmp_lt_u32 s12, {MAXPOLL}
    s_cbranch_scc1 {lpoll}
    """)
    k.label(lout)
    lslow, lw = k.lab("slow"), k.lab("w")
    k(f"""
    s_mov_b32 s13, 255
    s_cmp_eq_u32 s10, 0
    s_cbranch_scc1 {lslow}
    s_add_u32 s5, s4, 1
    s_cmp_lg_u32 s5, s10
    s_cbranch_scc1 {lw}
    s_cmp_ge_u32 s8, 32
    s_cbranch_scc1 {lw}
    s_mov_b32 s13, s8
    s_branch {lw}
    """)
    k.label(lslow)
    k(f"""
    s_cmp_ge_u32 s9, 32
    s_cbranch_scc1 {lw}
    s_add_u32 s13, s9, 64
    """)
    k.label(lw)
    k(f"""
    v_mov_b32 v8, s13
    v_mov_b32 v9, {LDS_ROLE}
    ds_write_b32 v9, v8
    s_waitcnt lgkmcnt(0)
    s_mov_b64 exec, s[6:7]
    """)
    k.label(lel)
    k(f"""
    s_barrier
    v_mov_b32 v9, {LDS_ROLE}
    ds_read_b32 v8, v9
    s_waitcnt lgkmcnt(0)
    v_readfirstlane_b32 s13, v8
    s_nop 3
    s_cmp_eq_u32 s13, 255
    s_cbranch_scc1 {done}
    """)
    k(f"""
    v_lshlrev_b32 v50, 4, v0
    v_add_u32 v51, 4096, v50                 ; chunk1
    v_mov_b32 v8, {BIG}
    v_cmp_gt_u32 vcc, 192, v0
    s_nop 1
    v_cndmask_b32 v51, v8, v51, vcc
    v_cndmask_b32 v54, -1, 0, vcc
    ; lds addr: row=chunk/56, col=chunk%56
    v_mul_u32_u24 v9, 1171, v0
    v_lshrrev_b32 v9, 16, v9
    v_mul_u32_u24 v10, 56, v9
    v_sub_u32 v10, v0, v10
    v_mul_u32_u24 v52, 912, v9
    v_lshl_add_u32 v52, v10, 4, v52
    v_add_u32 v52, {LDS_MS}, v52
    v_add_u32 v11, 256, v0
    v_mul_u32_u24 v9, 1171, v11
    v_lshrrev_b32 v9, 16, v9
    v_mul_u32_u24 v10, 56, v9
    v_sub_u32 v10, v11, v10
    v_mul_u32_u24 v53, 912, v9
    v_lshl_add_u32 v53, v10, 4, v53
    v_add_u32 v53, {LDS_MS}, v53
    v_mov_b32 v8, {LDS_ROLE+16}
    v_cndmask_b32 v53, v8, v53, vcc
    v_and_b32 v9, 7, v2
    v_mul_u32_u24 v55, 912, v9
    v_lshl_add_u32 v55, v3, 4, v55
    v_add_u32 v55, {LDS_MS}, v55
    v_lshlrev_b32 v56, 4, v62                ; lane*16
    s_lshl_b32 s14, s3, 15
    v_add_u32 v57, s14, v56
    """)
    l_slowp1, l_p2f, l_p2s = k.lab("sp1"), k.lab("p2f"), k.lab("p2s")
    k(f"""
    s_cmp_ge_u32 s13, 80
    s_cbranch_scc1 {l_p2s}
    s_cmp_ge_u32 s13, 64
    s_cbranch_scc1 {l_slowp1}
    s_cmp_ge_u32 s13, 16
    s_cbranch_scc1 {l_p2f}
    """)

    def gather(k):
        lp, lo = k.lab("gp"), k.lab("go")
        k(f"""
        s_lshl_b32 s21, s20, 13
        s_add_u32 s21, s21, {MB}
        s_mov_b32 s12, 0
        """)
        k.label(lp)
        k(f"""
        buffer_load_dwordx4 v[8:11], v50, s[44:47], s21 offen sc1
        buffer_load_dwordx4 v[12:15], v51, s[44:47], s21 offen sc1
        s_waitcnt vmcnt(0)
        v_or_b32 v12, v12, v54
        v_or_b32 v13, v13, v54
        v_or_b32 v14, v14, v54
        v_or_b32 v15, v15, v54
        v_min_u32 v4, v8, v9
        v_min3_u32 v4, v4, v10, v11
        v_min3_u32 v4, v4, v12, v13
        v_min3_u32 v4, v4, v14, v15
        v_cmp_eq_u32 vcc, 0, v4
        s_cbranch_vccz {lo}
        s_add_u32 s12, s12, 1
        s_cmp_lt_u32 s12, {MAXPOLL}
        s_cbranch_scc1 {lp}
        """)
        k.label(lo)
        for r in range(8, 16):
            k(f"v_xor_b32 v{r}, 0x80008000, v{r}")
        k("""
        ds_write_b128 v52, v[8:11]
        ds_write_b128 v53, v[12:15]
        s_waitcnt lgkmcnt(0)
        s_barrier
        """)
        for kk in range(14):
            k(f"ds_read_b128 v[{64+4*kk}:{67+4*kk}], v55 offset:{kk*64}")

    def load_weights(k, nfrag, locs, colreg):
        k(f"s_mov_b32 s22, {L.WTF}")
        cnt = 0
        for f in range(nfrag):
            T, kk = divmod(f, 14)
            kind, r = locs[f]
            if kk % 2 == 0:
                k(f"v_add_u32 v4, {kk*2048}, v{colreg(T)}")
            off = (kk % 2) * 2048
            if kind == 'a':
                k(f"buffer_load_dwordx4 a[{r}:{r+3}], v4, s[44:47], s22 offen offset:{off}")
            elif kind == 'v':
                k(f"buffer_load_dwordx4 v[{r}:{r+3}], v4, s[44:47], s22 offen offset:{off}")
            else:
                k(f"""
                buffer_load_dwordx4 v[8:11], v4, s[44:47], s22 offen offset:{off}
                s_waitcnt vmcnt(0)
                ds_write_b128 v57, v[8:11] offset:{r*1024}
                """)
        k("s_waitcnt vmcnt(0) lgkmcnt(0)")

    def mm_phase(k, ntile, locs, accbase, weights_are_A):
        seq = [(kk, T) for kk in range(14) for T in range(ntile)]
        ldsq = [(kk, T) for (kk, T) in seq if locs[T * 14 + kk][0] == 'l']
        ring = {}
        nissued = 0
        def issue():
            nonlocal nissued
            if nissued < len(ldsq):
                kk, T = ldsq[nissued]
                r = 152 + 4 * (nissued % 4)
                ring[(kk, T)] = (r, nissued)
                k(f"ds_read_b128 v[{r}:{r+3}], v57 offset:{locs[T*14+kk][1]*1024}")
                nissued += 1
        for _ in range(3): issue()
        first = True
        consumed = 0
        for (kk, T) in seq:
            kind, r = locs[T * 14 + kk]
            if first:
                k(f"s_waitcnt lgkmcnt({nissued})")
                first = False
            if kind == 'l':
                rr, idx = ring[(kk, T)]
                k(f"s_waitcnt lgkmcnt({nissued - idx - 1})")
                W = f"v[{rr}:{rr+3}]"
            elif kind == 'a':
                W = f"a[{r}:{r+3}]"
            else:
                W = f"v[{r}:{r+3}]"
            A = accbase + 4 * T
            c = "0" if kk == 0 else f"v[{A}:{A+3}]"
            M = f"v[{64+4*kk}:{67+4*kk}]"
            if weights_are_A:
                k(f"v_mfma_f32_16x16x32_bf16 v[{A}:{A+3}], {W}, {M}, {c}")
            else:
                k(f"v_mfma_f32_16x16x32_bf16 v[{A}:{A+3}], {M}, {W}, {c}")
            if kind == 'l':
                issue()

    def locs_for(nfrag, vregs, nlds):
        locs = []
        nreg = nfrag - nlds
        for f in range(nfrag):
            if f < 64: locs.append(('a', 4 * f))
            elif f < nreg: locs.append(('v', vregs + 4 * (f - 64)))
            else: locs.append(('l', f - nreg))
        return locs

    def p1(k, slow):
        st = " sc1" if slow else ""
        locs = locs_for(112, 192, 32)
        k("s_and_b32 s15, s13, 15          ; head")
        k(f"""
        v_lshrrev_b32 v8, 3, v2            ; g'>>1
        v_lshlrev_b32 v8, 4, v8
        v_bfe_u32 v9, v2, 2, 1             ; g'&1
        v_lshl_add_u32 v8, v9, 2, v8
        v_and_b32 v9, 3, v2
        v_add_u32 v8, v8, v9
        v_mov_b32 v58, v8
        v_lshrrev_b32 v9, 1, v3
        v_lshlrev_b32 v9, 10, v9
        v_and_b32 v10, 1, v3
        v_lshl_add_u32 v9, v10, 9, v9      ; (gk>>1)*1024+(gk&1)*512
        v_mov_b32 v59, v9
        s_lshl_b32 s16, s15, 3
        s_lshl_b32 s17, s3, 1
        s_add_u32 s16, s16, s17
        """)
        for T in range(8):
            tt, sub, isk = (T & 3) >> 1, T & 1, T >> 2
            k(f"""
            s_add_u32 s17, s16, {isk*128+tt}
            s_mul_i32 s17, s17, 28672
            v_add_u32 v{32+T}, {8*sub}, v8
            v_lshl_add_u32 v{32+T}, v{32+T}, 4, v9
            v_add_u32 v{32+T}, s17, v{32+T}
            """)
        load_weights(k, 112, locs, lambda T: 32 + T)
        k(f"""
        v_lshl_add_u32 v44, v58, 4, v59
        s_add_u32 s17, s16, 128
        s_lshl_b32 s17, s17, 11
        s_add_u32 s23, s17, {L.QKB}         ; + s*524288
        v_lshlrev_b32 v45, 7, v3
        v_lshl_add_u32 v45, v2, 4, v45
        v_mov_b32 v8, {BIG}
        v_cmp_gt_u32 vcc, 8, v2
        s_nop 1
        v_cndmask_b32 v45, v8, v45, vcc
        s_lshl_b32 s24, s15, 12
        s_lshl_b32 s17, s3, 10
        s_add_u32 s24, s24, s17
        s_add_u32 s24, s24, {L.KM}
        v_mul_u32_u24 v46, 80, v2
        v_lshl_add_u32 v47, v3, 3, v46
        v_add_u32 v47, 64, v47
        v_lshl_add_u32 v46, v3, 4, v46
        v_cndmask_b32 v46, v8, v46, vcc
        v_cndmask_b32 v47, v8, v47, vcc
        v_cmp_gt_u32 s[26:27], 2, v3        ; g<2
        s_nop 1
        v_cndmask_b32 v47, v8, v47, s[26:27]
        s_mul_i32 s25, s15, 640
        s_add_u32 s25, s25, {PB}
        v_mul_u32_u24 v48, 48, v62
        s_mul_i32 s17, s3, 3072
        s_add_u32 s17, s17, {LDS_EX}
        v_add_u32 v49, s17, v48
        v_add_u32 v48, {LDS_EX}, v48
        s_mov_b32 s28, {f32hex(math.log2(math.e)/16)}
        s_mov_b32 s20, 0
        """)
        def kx_load():
            for Tsel in range(2):
                for tt in range(2):
                    r = 168 + 8 * Tsel + 4 * tt
                    k(f"buffer_load_dwordx4 v[{r}:{r+3}], v44, s[44:47], s23 offen offset:{tt*2048+Tsel*128}")
        kx_load()
        lloop, lend, lnw0 = k.lab("loop"), k.lab("end"), k.lab("nw0")
        k.label(lloop)
        gather(k)
        mm_phase(k, 8, locs, 120, True)
        k("s_nop 7")
        for isk in range(2):
            for tt in range(2):
                T0 = 120 + 4 * (4 * isk + 2 * tt)
                d = 16 + 8 * isk + 4 * tt
                k(f"""
                v_cvt_pk_bf16_f32 v{d}, v{T0}, v{T0+1}
                v_cvt_pk_bf16_f32 v{d+1}, v{T0+2}, v{T0+3}
                v_cvt_pk_bf16_f32 v{d+2}, v{T0+4}, v{T0+5}
                v_cvt_pk_bf16_f32 v{d+3}, v{T0+6}, v{T0+7}
                """)
        k(f"""
        buffer_store_dwordx4 v[24:27], v45, s[44:47], s24 offen
        buffer_store_dwordx4 v[28:31], v45, s[44:47], s24 offen offset:512
        s_add_u32 s24, s24, 65536
        s_cmp_eq_u32 s20, 63
        s_cbranch_scc1 {lend}
        s_waitcnt vmcnt(2)
        v_mfma_f32_16x16x32_bf16 v[32:35], v[24:27], v[16:19], 0
        v_mfma_f32_16x16x32_bf16 v[36:39], v[168:171], v[16:19], 0
        v_mfma_f32_16x16x32_bf16 v[40:43], v[176:179], v[16:19], 0
        v_mfma_f32_16x16x32_bf16 v[32:35], v[28:31], v[20:23], v[32:35]
        v_mfma_f32_16x16x32_bf16 v[36:39], v[172:175], v[20:23], v[36:39]
        v_mfma_f32_16x16x32_bf16 v[40:43], v[180:183], v[20:23], v[40:43]
        s_add_u32 s23, s23, 524288
        s_nop 7
        ds_write_b128 v49, v[32:35]
        ds_write_b128 v49, v[36:39] offset:16
        ds_write_b128 v49, v[40:43] offset:32
        """)
        kx_load()
        k(f"""
        s_waitcnt lgkmcnt(0)
        s_barrier
        s_cmp_lg_u32 s3, 0
        s_cbranch_scc1 {lnw0}
        """)
        for w in range(1, 4):
            for c in range(3):
                r = 120 + 12 * (w - 1) + 4 * c
                k(f"ds_read_b128 v[{r}:{r+3}], v48 offset:{w*3072+c*16}")
        k("s_waitcnt lgkmcnt(0)")
        for j in range(12):
            k(f"""
            v_add_f32 v{32+j}, v{32+j}, v{120+j}
            v_add_f32 v{132+j}, v{132+j}, v{144+j}
            v_add_f32 v{32+j}, v{32+j}, v{132+j}
            """)
        k("v_mov_b32 v8, 0xff800000")
        for j in range(4):
            k(f"v_cndmask_b32 v{32+j}, v8, v{32+j}, s[26:27]")
        k("""
        v_max_f32 v8, v32, v33
        v_max3_f32 v8, v8, v34, v35
        v_max3_f32 v8, v8, v36, v37
        v_max3_f32 v8, v8, v38, v39
        v_max3_f32 v8, v8, v40, v41
        v_max3_f32 v8, v8, v42, v43
        v_mov_b32 v9, v8
        s_nop 1
        v_permlane16_swap_b32 v8, v9
        s_nop 1
        v_max_f32 v8, v8, v9
        v_mov_b32 v9, v8
        s_nop 1
        v_permlane32_swap_b32 v8, v9
        s_nop 1
        v_max_f32 v8, v8, v9
        v_mul_f32 v8, s28, v8
        """)
        for j in range(12):
            k(f"v_fma_f32 v{32+j}, v{32+j}, s28, -v8")
        for j in range(12):
            k(f"v_exp_f32 v{32+j}, v{32+j}")
        k("""
        s_nop 0
        v_add_f32 v8, v32, v33
        v_add_f32 v9, v34, v35
        v_add_f32 v10, v36, v37
        v_add_f32 v11, v38, v39
        v_add_f32 v8, v8, v40
        v_add_f32 v9, v9, v41
        v_add_f32 v10, v10, v42
        v_add_f32 v11, v11, v43
        v_add_f32 v8, v8, v9
        v_add_f32 v10, v10, v11
        v_add_f32 v8, v8, v10
        v_mov_b32 v9, v8
        s_nop 1
        v_permlane16_swap_b32 v8, v9
        s_nop 1
        v_add_f32 v8, v8, v9
        v_mov_b32 v9, v8
        s_nop 1
        v_permlane32_swap_b32 v8, v9
        s_nop 1
        v_add_f32 v8, v8, v9
        v_rcp_f32 v8, v8
        s_nop 0
        """)
        for j in range(12):
            k(f"v_mul_f32 v{32+j}, v{32+j}, v8")
        for j in range(6):
            k(f"""
            v_cvt_pk_bf16_f32 v{8+j}, v{32+2*j}, v{33+2*j}
            v_or_b32 v{8+j}, 0x80008000, v{8+j}
            """)
        k(f"""
        buffer_store_dwordx4 v[10:13], v46, s[44:47], s25 offen{st}
        buffer_store_dwordx2 v[8:9], v47, s[44:47], s25 offen{st}
        """)
        k.label(lnw0)
        k(f"""
        s_add_u32 s25, s25, 10240
        s_add_u32 s20, s20, 1
        s_branch {lloop}
        """)
        k.label(lend)
        k(f"s_branch {done}")

    def p2(k, slow):
        st = " sc1" if slow else ""
        locs = locs_for(98, 232, 28)
        k(f"""
        s_and_b32 s15, s13, 15          ; slice
        s_mul_i32 s16, s15, 28          ; c0
        v_lshrrev_b32 v9, 1, v3
        v_lshlrev_b32 v9, 10, v9
        v_and_b32 v10, 1, v3
        v_lshl_add_u32 v9, v10, 9, v9      ; (gk>>1)*1024+(gk&1)*512
        v_mov_b32 v59, v9
        s_lshl_b32 s17, s3, 2              ; 4w
        v_mov_b32 v60, {BIG}
        v_cmp_gt_u32 s[26:27], 2, v3       ; g<2
        """)
        for T in range(7):
            k(f"""
            v_add_u32 v8, {16*T}, v2
            v_mul_u32_u24 v10, 2341, v8
            v_lshrrev_b32 v10, 16, v10         ; hl
            v_mul_u32_u24 v11, 28, v10
            v_sub_u32 v11, v8, v11             ; cl
            v_add_u32 v10, s17, v10            ; h
            v_add_u32 v11, s16, v11            ; c
            v_mul_u32_u24 v12, 448, v10
            v_add_u32 v12, v12, v11
            v_lshrrev_b32 v13, 5, v12
            v_add_u32 v13, 256, v13
            v_mul_u32_u24 v13, 28672, v13
            v_and_b32 v14, 31, v12
            v_lshl_add_u32 v13, v14, 4, v13
            v_add_u32 v{32+T}, v13, v9
            v_lshrrev_b32 v13, 1, v10
            v_mul_u32_u24 v13, 14336, v13
            v_lshrrev_b32 v14, 5, v11
            v_lshl_add_u32 v13, v14, 10, v13
            v_and_b32 v14, 31, v11
            v_lshl_add_u32 v14, v3, 5, v14
            v_lshl_add_u32 v13, v14, 4, v13
            v_and_b32 v14, 1, v10
            v_lshl_add_u32 v13, v14, 3, v13
            v_cndmask_b32 v{40+T}, v60, v13, s[26:27]
            """)
        load_weights(k, 98, locs, lambda T: 32 + T)
        for hl in range(4):
            for ct in range(2):
                k(f"""
                s_add_u32 s18, s17, {hl}
                s_mul_i32 s18, s18, 448
                s_add_u32 s18, s18, s16
                s_add_u32 s18, s18, {16*ct}
                v_add_u32 v8, s18, v2
                v_lshrrev_b32 v10, 5, v8
                v_lshlrev_b32 v10, 11, v10
                v_and_b32 v11, 31, v8
                v_lshl_add_u32 v10, v11, 4, v10
                v_add_u32 v{24+2*hl+ct}, v10, v59
                """)
        k(f"""
        s_mov_b32 s23, {L.VOX}
        s_mov_b32 s24, {L.UM}
        s_lshl_b32 s18, s3, 11
        s_add_u32 s18, s18, {LDS_UL}
        v_lshlrev_b32 v47, 4, v2
        v_lshl_add_u32 v47, v3, 3, v47
        v_add_u32 v47, s18, v47
        v_mov_b32 v8, {LDS_ROLE+32}
        v_cndmask_b32 v47, v8, v47, s[26:27]
        v_mul_u32_u24 v48, 28, v3
        v_add_u32 v48, v48, v2
        v_lshlrev_b32 v48, 4, v48
        v_add_u32 v48, s18, v48
        v_and_b32 v8, 7, v2
        v_mul_u32_u24 v49, 80, v8
        v_mul_u32_u24 v9, 640, v3
        v_add_u32 v61, v49, v9
        v_add_u32 v61, 64, v61
        v_lshl_add_u32 v49, v3, 4, v49     ; x part
        s_mul_i32 s25, s3, 2560
        s_add_u32 s25, s25, {PB}
        v_lshlrev_b32 v22, 5, v62
        v_lshlrev_b32 v8, 11, v1
        v_add_u32 v23, v22, v8
        v_add_u32 v23, {LDS_EX}, v23
        v_add_u32 v22, {LDS_EX}, v22
        v_mul_u32_u24 v21, 896, v2
        v_lshl_add_u32 v21, v3, 3, v21
        s_mul_i32 s18, s15, 56
        v_add_u32 v21, s18, v21
        v_cmp_gt_u32 vcc, 8, v2
        s_nop 1
        v_cndmask_b32 v21, v60, v21, vcc
        v_cmp_gt_u32 vcc, 3, v3
        s_nop 1
        v_cndmask_b32 v20, v60, v21, vcc
        s_mov_b32 s20, 0
        """)
        def vox_load():
            for j in range(8):
                k(f"buffer_load_dwordx4 v[{168+4*j}:{171+4*j}], v{24+j}, s[44:47], s23 offen")
        vox_load()
        lloop, lend, lnw0, lp, lo = k.lab("loop"), k.lab("end"), k.lab("nw0"), k.lab("pp"), k.lab("po")
        k.label(lloop)
        gather(k)
        mm_phase(k, 7, locs, 120, False)
        k("s_nop 7")
        for T in range(7):
            A = 120 + 4 * T
            k(f"""
            v_cvt_pk_bf16_f32 v{A}, v{A}, v{A+1}
            v_cvt_pk_bf16_f32 v{A+1}, v{A+2}, v{A+3}
            ds_write_b64 v47, v[{A}:{A+1}] offset:{T*256}
            buffer_store_dwordx2 v[{A}:{A+1}], v{40+T}, s[44:47], s24 offen
            """)
        k(f"""
        s_add_u32 s24, s24, 114688
        s_cmp_eq_u32 s20, 63
        s_cbranch_scc1 {lend}
        s_waitcnt lgkmcnt(0)
        ds_read_b128 v[220:223], v48
        ds_read_b128 v[224:227], v48 offset:256
        s_mov_b32 s12, 0
        """)
        k.label(lp)
        for hl in range(4):
            k(f"buffer_load_dwordx4 v[{200+4*hl}:{203+4*hl}], v49, s[44:47], s25 offen offset:{hl*640} sc1")
        k(f"""
        buffer_load_dwordx4 v[216:219], v61, s[44:47], s25 offen sc1
        s_waitcnt vmcnt(0)
        v_and_b32 v4, v200, v201
        """)
        for r in range(202, 220, 2):
            k(f"v_and_b32 v4, v4, v{r}\nv_and_b32 v4, v4, v{r+1}")
        k(f"""
        v_and_b32 v4, 0x80008000, v4
        v_cmp_ne_u32 vcc, 0x80008000, v4
        s_cbranch_vccz {lo}
        s_add_u32 s12, s12, 1
        s_cmp_lt_u32 s12, {MAXPOLL}
        s_cbranch_scc1 {lp}
        """)
        k.label(lo)
        k("s_waitcnt lgkmcnt(0)")
        for ct in range(2):
            k(f"v_mfma_f32_16x16x32_bf16 v[{8+4*ct}:{11+4*ct}], v[{220+4*ct}:{223+4*ct}], v[216:219], 0")
        for hl in range(4):
            for ct in range(2):
                r = 168 + 4 * (2 * hl + ct)
                k(f"v_mfma_f32_16x16x32_bf16 v[{8+4*ct}:{11+4*ct}], v[{r}:{r+3}], v[{200+4*hl}:{203+4*hl}], v[{8+4*ct}:{11+4*ct}]")
        k(f"""
        s_add_u32 s23, s23, 458752
        s_add_u32 s25, s25, 10240
        s_nop 7
        ds_write_b128 v23, v[8:11]
        ds_write_b128 v23, v[12:15] offset:16
        """)
        vox_load()
        k(f"""
        s_waitcnt lgkmcnt(0)
        s_barrier
        s_cmp_lg_u32 s3, 0
        s_cbranch_scc1 {lnw0}
        """)
        for w in range(1, 4):
            for c in range(2):
                r = 120 + 8 * (w - 1) + 4 * c
                k(f"ds_read_b128 v[{r}:{r+3}], v22 offset:{w*2048+c*16}")
        k("s_waitcnt lgkmcnt(0)")
        for j in range(8):
            k(f"""
            v_add_f32 v{8+j}, v{8+j}, v{120+j}
            v_add_f32 v{128+j}, v{128+j}, v{136+j}
            v_add_f32 v{8+j}, v{8+j}, v{128+j}
            v_sub_f32 v{8+j}, 0, v{8+j}
            """)
        k("v_mov_b32 v5, 0x80008000")
        for j in range(4):
            k(f"""
            v_cvt_pk_bf16_f32 v{8+j}, v{8+2*j}, v{9+2*j}
            v_xor_b32 v{8+j}, v5, v{8+j}
            v_cmp_eq_u32 vcc, 0, v{8+j}
            s_nop 1
            v_cndmask_b32 v{8+j}, v{8+j}, v5, vcc
            """)
        k(f"""
        s_add_u32 s21, s20, 1
        s_lshl_b32 s21, s21, 13
        s_add_u32 s21, s21, {MB}
        buffer_store_dwordx2 v[8:9], v21, s[44:47], s21 offen{st}
        buffer_store_dwordx2 v[10:11], v20, s[44:47], s21 offen offset:32{st}
        """)
        k.label(lnw0)
        k(f"""
        s_add_u32 s20, s20, 1
        s_branch {lloop}
        """)
        k.label(lend)
        k(f"s_branch {done}")

    p1(k, False)
    k.label(l_slowp1); p1(k, True)
    k.label(l_p2f); p2(k, False)
    k.label(l_p2s); p2(k, True)
    k.label(done)
    return k, (NWG, 256, LDS_TOTAL), dict(vgpr=256, accum=256, agpr=256)
```

```python
from asm import *
import layout as L
from k_a import std_prologue, epi_res_ln, f32hex
import math
BIG = 0x7FFFFF00
PL = 8192

def gen_kb3(last):
    name = "kb3b_kernel" if last else "kb3a_kernel"
    k = Kern(name)
    NWG = 64
    done = name + "_done"
    std_prologue(k, NWG, done)
    k(f"""
    s_mov_b32 s4, s2                ; segment
    s_lshl_b32 s6, s4, 19
    s_add_u32 s6, s6, {L.QKB}
    s_lshl_b32 s7, s4, 16
    s_add_u32 s7, s7, {L.KM}
    v_lshlrev_b32 v6, 7, v3
    v_lshl_add_u32 v6, v2, 4, v6
    v_mov_b32 v8, {BIG}
    v_cmp_gt_u32 vcc, 8, v2
    s_nop 1
    v_cndmask_b32 v6, v8, v6, vcc
    v_lshlrev_b32 v7, 2, v3
    v_sub_u32 v7, v2, v7            ; n-4hi
    s_mov_b32 s12, {f32hex(math.log2(math.e)/16)}
    v_add_u32 v9, {PL}, v5
    """)
    for hh in range(2):
        k(f"""
        s_lshl_b32 s8, s3, 1
        s_add_u32 s8, s8, {hh}          ; head
        s_lshl_b32 s9, s8, 14
        s_add_u32 s9, s9, s6            ; Q base
        s_add_u32 s10, s9, 262144
        s_lshl_b32 s11, s8, 12
        s_add_u32 s11, s11, s7
        v_mov_b32 v4, v5
        """)
        for kk in range(16):
            if kk % 4 == 0 and kk:
                k("v_add_u32 v4, 4096, v4")
            k(f"""
            buffer_load_dwordx4 a[{4*kk}:{4*kk+3}], v4, s[44:47], s9 offen offset:{(kk%4)*1024}
            buffer_load_dwordx4 a[{64+4*kk}:{64+4*kk+3}], v4, s[44:47], s10 offen offset:{(kk%4)*1024}
            buffer_load_dwordx4 v[{64+4*kk}:{64+4*kk+3}], v6, s[44:47], s11 offen offset:{kk*256}
            """)
        k("s_waitcnt vmcnt(0)")
        for kk in range(16):
            c0 = "0" if kk == 0 else "v[16:31]"
            c1 = "0" if kk == 0 else "v[32:47]"
            k(f"""
            v_mfma_f32_32x32x16_bf16 v[16:31], a[{64+4*kk}:{64+4*kk+3}], a[{4*kk}:{4*kk+3}], {c0}
            v_mfma_f32_32x32x16_bf16 v[32:47], v[{64+4*kk}:{64+4*kk+3}], a[{4*kk}:{4*kk+3}], {c1}
            """)
        k("s_nop 15\ns_nop 3\nv_mov_b32 v8, 0xff800000")
        for r in range(16):
            c = 8 * (r >> 2) + (r & 3)
            k(f"""
            v_cmp_le_i32 vcc, {c}, v7
            s_nop 1
            v_cndmask_b32 v{16+r}, v8, v{16+r}, vcc
            """)
        k("v_max_f32 v10, v32, v33\nv_max3_f32 v10, v10, v34, v35")
        for r in range(0, 16, 2):
            k(f"v_max3_f32 v10, v10, v{16+r}, v{17+r}")
        k("""
        v_mov_b32 v11, v10
        s_nop 1
        v_permlane32_swap_b32 v10, v11
        s_nop 1
        v_max_f32 v10, v10, v11
        v_mul_f32 v10, s12, v10
        """)
        for r in range(20):
            k(f"v_fma_f32 v{16+r}, v{16+r}, s12, -v10\nv_exp_f32 v{16+r}, v{16+r}")
        k("s_nop 0\nv_add_f32 v10, v16, v17")
        for r in range(2, 20):
            k(f"v_add_f32 v10, v10, v{16+r}")
        k("""
        v_mov_b32 v11, v10
        s_nop 1
        v_permlane32_swap_b32 v10, v11
        s_nop 1
        v_add_f32 v10, v10, v11
        v_rcp_f32 v10, v10
        s_nop 0
        """)
        for r in range(20):
            k(f"v_mul_f32 v{16+r}, v{16+r}, v10")
        for j in range(10):
            k(f"v_cvt_pk_bf16_f32 v{48+j}, v{16+2*j}, v{17+2*j}")
        k(f"""
        s_lshl_b32 s13, s8, 11
        v_add_u32 v10, s13, v9
        ds_write_b128 v10, v[48:51]
        ds_write_b128 v10, v[52:55] offset:1024
        s_lshl_b32 s13, s3, 10
        v_add_u32 v10, s13, v9
        ds_write_b64 v10, v[56:57] offset:{32768+8*hh}
        """)
    k(f"""
    s_waitcnt lgkmcnt(0)
    s_barrier
    s_mul_i32 s6, s4, 458752
    s_add_u32 s6, s6, {L.VOX}
    s_mul_i32 s7, s4, 114688
    s_add_u32 s7, s7, {L.UM}
    s_mov_b32 s52, s3
    s_add_u32 s53, s3, 8
    """)
    for ksx in range(40):
        dst = f"a[{4*ksx}:{4*ksx+3}]" if ksx < 32 else f"v[{96+4*(ksx-32)}:{99+4*(ksx-32)}]"
        k(f"ds_read_b128 {dst}, v9 offset:{ksx*1024}")
        if ksx % 8 == 7: k("s_waitcnt lgkmcnt(0)")
    for i in range(2):
        l = k.lab("t")
        k(f"""
        s_cmp_ge_u32 s{52+i}, 14
        s_cbranch_scc1 {l}
        s_lshl_b32 s8, s{52+i}, 11
        s_add_u32 s8, s8, s6
        s_lshl_b32 s9, s{52+i}, 10
        s_add_u32 s9, s9, s7
        """)
        A = 64 + 16 * i
        groups = [list(range(g, min(g + 12, 40))) for g in range(0, 40, 12)]
        for grp in groups:
            for j, ksx in enumerate(grp):
                if ksx < 32:
                    h, ksp = ksx >> 1, ksx & 1
                    k(f"s_add_u32 s10, s8, {h*28672}")
                    k(f"buffer_load_dwordx4 v[{16+4*j}:{19+4*j}], v5, s[44:47], s10 offen offset:{ksp*1024}")
                else:
                    k(f"s_add_u32 s10, s9, {(ksx-32)*14336}")
                    k(f"buffer_load_dwordx4 v[{16+4*j}:{19+4*j}], v5, s[44:47], s10 offen")
            k("s_waitcnt vmcnt(0)")
            for j, ksx in enumerate(grp):
                P = f"a[{4*ksx}:{4*ksx+3}]" if ksx < 32 else f"v[{96+4*(ksx-32)}:{99+4*(ksx-32)}]"
                c = "0" if ksx == 0 else f"v[{A}:{A+15}]"
                k(f"v_mfma_f32_32x32x16_bf16 v[{A}:{A+15}], v[{16+4*j}:{19+4*j}], {P}, {c}")
            k("s_nop 7")
        k.label(l)
    k("s_nop 15\ns_nop 3\nv_and_b32 v62, 63, v0")
    k(f"s_mul_i32 s8, s4, 28672\ns_add_u32 s8, s8, {L.X}")
    if last:
        srd(k, 48, P_OUT, 2048 * 448 * 2)
        k("s_mul_i32 s9, s4, 28672")
        epi_res_ln(k, 2, 64, 52, 8, 44, 8, 48, 9, False, 16)
    else:
        k(f"s_mul_i32 s9, s4, 28672\ns_add_u32 s9, s9, {L.X}")
        epi_res_ln(k, 2, 64, 52, 8, 44, 8, 44, 9, True, 16)
    k.label(done)
    return k, (NWG, 512, PL + 40960), dict(vgpr=128, accum=128, agpr=128)
```

```python
from asm import *
import layout as L

BIG = 0x7FFFFF00

def wave_sum(k, v, tmp, addr):
    for m in (1, 2, 4, 8, 16, 32):
        k(f"""
        v_xor_b32 v{addr}, {4*m}, v63
        ds_bpermute_b32 v{tmp}, v{addr}, v{v}
        s_waitcnt lgkmcnt(0)
        v_add_f32 v{v}, v{v}, v{tmp}
        """)

def gen_prep():
    k = Kern("prep_kernel")
    NBOX = (L.BOXEND - L.MBOX) // 1024
    NWG = 4096 + NBOX // 4
    assert NBOX % 4 == 0
    k(f"s_cmp_ge_u32 s2, {NWG}")
    k("s_cbranch_scc1 prep_kernel_done")
    load_args(k)
    k("""
    v_lshrrev_b32 v1, 6, v0
    v_and_b32 v62, 63, v0          ; lane
    s_nop 0
    v_readfirstlane_b32 s3, v1
    v_lshlrev_b32 v63, 2, v62      ; lane*4
    v_and_b32 v2, 31, v62          ; m
    v_lshrrev_b32 v3, 5, v62       ; hi
    s_lshl_b32 s4, s2, 2
    s_add_u32 s4, s4, s3           ; unit
    s_waitcnt lgkmcnt(0)
    """)
    srd(k, 44, P_WS, L.WS_BYTES)
    k("""
    v_mov_b32 v8, 0
    v_mov_b32 v9, 0
    v_mov_b32 v10, 0
    v_mov_b32 v11, 0
    v_lshlrev_b32 v5, 4, v62
    """)
    la, lb, lc, ld_, le, lst = [k.lab(x) for x in "abcde"] + [k.lab("st")]
    k(f"""
    s_cmp_lt_u32 s4, 8192
    s_cbranch_scc1 {la}
    s_cmp_lt_u32 s4, 12288
    s_cbranch_scc1 {lb}
    s_cmp_lt_u32 s4, 13824
    s_cbranch_scc1 {lc}
    s_cmp_lt_u32 s4, 14336
    s_cbranch_scc1 {ld_}
    s_cmp_lt_u32 s4, 16384
    s_cbranch_scc1 {le}
    """)
    lz = k.lab("z")
    k(f"""
    s_sub_u32 s4, s4, 16384
    s_lshl_b32 s9, s4, 10
    s_add_u32 s9, s9, {L.MBOX}
    s_and_b32 s5, s4, 511
    s_cmp_ge_u32 s4, 1024
    s_cbranch_scc1 {lz}
    s_cmp_ge_u32 s5, 7
    s_cbranch_scc1 {lz}
    """)
    srd(k, 48, P_MEM0, 7168)
    k(f"""
    s_lshl_b32 s5, s5, 10
    buffer_load_dwordx4 v[8:11], v5, s[48:51], s5 offen
    v_mov_b32 v12, 0x80008000
    s_waitcnt vmcnt(0)
    """)
    for i in range(4):
        k(f"""
        v_xor_b32 v{8+i}, v12, v{8+i}
        v_cmp_eq_u32 vcc, 0, v{8+i}
        s_nop 1
        v_cndmask_b32 v{8+i}, v{8+i}, v12, vcc
        """)
    k.label(lz)
    k("""
    buffer_store_dwordx4 v[8:11], v5, s[44:47], s9 offen
    s_branch prep_kernel_done
    """)
    def loads(joffs):
        for j in range(8):
            k(f"s_mov_b32 s{60+j}, {joffs[j]}")
        for j in range(8):
            k(f"buffer_load_ushort v{40 + j}, v{6 if (j>=4 and loads.alt) else 4}, s[48:51], s{60+j} offen")
    loads.alt = False
    k.label(la)
    k("""
    s_lshr_b32 s5, s4, 5           ; tile 0..255
    s_and_b32 s6, s4, 31           ; ks
    s_cmp_ge_u32 s6, 28
    s_cbranch_scc1 prep_kernel_done
    s_cmp_lt_u32 s5, 128
    s_cselect_b32 s48, s26, s28
    s_cselect_b32 s49, s27, s29
    s_mov_b32 s50, 3670016
    s_mov_b32 s51, 0x00020000
    s_and_b32 s7, s5, 127
    s_lshl_b32 s7, s7, 6
    s_lshl_b32 s8, s6, 17          ; ks*16*8192
    s_add_u32 s7, s7, s8
    v_lshlrev_b32 v4, 16, v3       ; hi*8*8192
    v_lshl_add_u32 v4, v2, 1, v4
    v_add_u32 v4, s7, v4
    s_mul_i32 s9, s5, 28672
    s_lshl_b32 s10, s6, 10
    s_add_u32 s9, s9, s10
    """)
    k(f"s_add_u32 s9, s9, {L.WTF}")
    loads([j * 8192 for j in range(8)])
    k(f"s_branch {lst}")
    k.label(lb)
    k("""
    s_sub_u32 s4, s4, 8192
    s_lshr_b32 s5, s4, 8           ; h
    s_lshr_b32 s6, s4, 4
    s_and_b32 s6, s6, 15           ; ct
    s_and_b32 s7, s4, 15           ; ks
    s_cmp_ge_u32 s6, 14
    s_cbranch_scc1 prep_kernel_done
    """)
    srd(k, 48, P_WO_B, 3670016)
    k("""
    s_lshl_b32 s8, s5, 8
    s_lshl_b32 s9, s7, 4
    s_add_u32 s8, s8, s9           ; h*256+16ks
    s_mul_i32 s8, s8, 896
    s_lshl_b32 s9, s6, 6
    s_add_u32 s8, s8, s9           ; + ct*64
    v_mul_u32_u24 v4, 7168, v3     ; hi*8*896
    v_lshl_add_u32 v4, v2, 1, v4
    v_add_u32 v4, s8, v4
    s_mul_i32 s9, s5, 14
    s_add_u32 s9, s9, s6
    s_lshl_b32 s9, s9, 4
    s_add_u32 s9, s9, s7
    s_lshl_b32 s9, s9, 10
    """)
    k(f"s_add_u32 s9, s9, {L.WOF}")
    loads([j * 896 for j in range(8)])
    k(f"s_branch {lst}")
    k.label(lc)
    k("""
    s_sub_u32 s4, s4, 12288
    s_lshr_b32 s5, s4, 5           ; tile
    s_and_b32 s6, s4, 31           ; ks
    s_cmp_ge_u32 s6, 28
    s_cbranch_scc1 prep_kernel_done
    """)
    srd(k, 48, P_WQKV, 448 * 1344 * 2)
    k(f"""
    s_mul_i32 s7, s5, 56
    s_mul_i32 s8, s6, 43008        ; 16*2688
    s_add_u32 s7, s7, s8
    v_mul_u32_u24 v4, 21504, v3    ; hi*8*2688
    v_lshl_add_u32 v4, v2, 1, v4
    v_add_u32 v4, s7, v4
    v_mov_b32 v6, {BIG}
    v_cmp_gt_u32 vcc, 28, v2
    s_nop 1
    v_cndmask_b32 v4, v6, v4, vcc
    s_mul_i32 s9, s5, 28672
    s_lshl_b32 s10, s6, 10
    s_add_u32 s9, s9, s10
    s_add_u32 s9, s9, {L.WAF}
    """)
    loads([j * 2688 for j in range(8)])
    k(f"s_branch {lst}")
    k.label(ld_)
    k("""
    s_sub_u32 s4, s4, 13824
    s_lshr_b32 s5, s4, 5           ; ct
    s_and_b32 s6, s4, 31           ; ks
    s_cmp_ge_u32 s5, 14
    s_cbranch_scc1 prep_kernel_done
    """)
    srd(k, 48, P_WO_A, 448 * 448 * 2)
    k(f"""
    s_lshr_b32 s7, s6, 1           ; h
    s_and_b32 s8, s6, 1            ; ks'
    s_mul_i32 s7, s7, 28
    s_lshl_b32 s10, s8, 4
    s_add_u32 s7, s7, s10          ; h*28+16ks'
    s_mul_i32 s7, s7, 896
    s_lshl_b32 s10, s5, 6
    s_add_u32 s7, s7, s10
    v_mul_u32_u24 v4, 3584, v3     ; hi*4*896
    v_lshl_add_u32 v4, v2, 1, v4
    v_add_u32 v4, s7, v4
    v_mov_b32 v7, {BIG}
    v_mov_b32 v6, s8
    v_and_b32 v6, v6, v3
    v_cmp_eq_u32 vcc, 0, v6
    s_nop 1
    v_cndmask_b32 v6, v7, v4, vcc
    s_lshl_b32 s9, s5, 5
    s_add_u32 s9, s9, s6
    s_lshl_b32 s9, s9, 10
    s_add_u32 s9, s9, {L.WOAF}
    """)
    loads.alt = True
    loads([(j & 3) * 896 + (j >> 2) * 7168 for j in range(8)])
    loads.alt = False
    k.label(lst)
    k("""
    s_waitcnt vmcnt(0)
    v_lshl_or_b32 v8, v41, 16, v40
    v_lshl_or_b32 v9, v43, 16, v42
    v_lshl_or_b32 v10, v45, 16, v44
    v_lshl_or_b32 v11, v47, 16, v46
    buffer_store_dwordx4 v[8:11], v5, s[44:47], s9 offen
    s_branch prep_kernel_done
    """)
    k.label(le)
    k("s_sub_u32 s4, s4, 14336        ; row")
    srd(k, 48, P_AX, 2048 * 448 * 2)
    k(f"""
    s_mul_i32 s5, s4, 896
    v_mov_b32 v6, {BIG}
    v_cmp_gt_u32 vcc, 56, v62
    s_nop 1
    v_cndmask_b32 v4, v6, v5, vcc
    buffer_load_dwordx4 v[8:11], v4, s[48:51], s5 offen
    s_waitcnt vmcnt(0)
    """)
    for i in range(4):
        k(f"""
        v_lshlrev_b32 v{16+2*i}, 16, v{8+i}
        v_and_b32 v{17+2*i}, 0xffff0000, v{8+i}
        """)
    k("v_add_f32 v30, v16, v17")
    for i in range(2, 8):
        k(f"v_add_f32 v30, v30, v{16+i}")
    wave_sum(k, 30, 31, 32)
    k("v_mul_f32 v30, 0x3b124925, v30   ; 1/448")
    for i in range(8):
        k(f"v_sub_f32 v{16+i}, v{16+i}, v30")
    k("v_mul_f32 v33, v16, v16")
    for i in range(1, 8):
        k(f"v_fmac_f32 v33, v{16+i}, v{16+i}")
    k("""
    v_cndmask_b32 v33, 0, v33, vcc
    """)
    wave_sum(k, 33, 31, 32)
    k("""
    v_mov_b32 v34, 0x3727c5ac      ; 1e-5
    v_fmac_f32 v34, 0x3b124925, v33
    v_rsq_f32 v34, v34
    s_nop 0
    """)
    for i in range(8):
        k(f"v_mul_f32 v{16+i}, v{16+i}, v34")
    for i in range(4):
        k(f"v_cvt_pk_bf16_f32 v{8+i}, v{16+2*i}, v{17+2*i}")
    k(f"""
    s_lshr_b32 s6, s4, 5
    s_mul_i32 s6, s6, 28672
    s_and_b32 s7, s4, 31
    s_lshl_b32 s7, s7, 4
    s_add_u32 s6, s6, s7
    s_add_u32 s6, s6, {L.XN}
    v_lshrrev_b32 v12, 1, v62
    v_lshlrev_b32 v12, 10, v12
    v_and_b32 v13, 1, v62
    v_lshl_add_u32 v12, v13, 9, v12
    v_cndmask_b32 v12, v6, v12, vcc
    buffer_store_dwordx4 v[8:11], v12, s[44:47], s6 offen
    """)
    k.label("prep_kernel_done")
    return k, (NWG, 256, 0), dict(vgpr=64)

def gen_vo():
    k = Kern("vo_kernel")
    NWG = 1024
    k(f"s_cmp_ge_u32 s2, {NWG}")
    k("s_cbranch_scc1 vo_kernel_done")
    load_args(k)
    k("""
    v_lshrrev_b32 v1, 6, v0
    v_and_b32 v62, 63, v0
    s_nop 0
    v_readfirstlane_b32 s3, v1
    v_and_b32 v2, 31, v62          ; m
    v_lshrrev_b32 v3, 5, v62       ; hi
    s_lshl_b32 s4, s2, 2
    s_add_u32 s4, s4, s3
    s_lshr_b32 s5, s4, 8           ; h
    s_lshr_b32 s6, s4, 4
    s_and_b32 s6, s6, 15           ; dt
    s_and_b32 s7, s4, 15           ; ct
    s_cmp_ge_u32 s6, 14
    s_cbranch_scc1 vo_kernel_done
    s_cmp_ge_u32 s7, 14
    s_cbranch_scc1 vo_kernel_done
    s_waitcnt lgkmcnt(0)
    """)
    srd(k, 44, P_WS, L.WS_BYTES)
    srd(k, 48, P_WV, 3670016)
    k(f"""
    s_lshl_b32 s8, s6, 18
    s_lshl_b32 s9, s5, 9
    s_add_u32 s8, s8, s9
    v_lshlrev_b32 v4, 13, v2
    v_lshl_add_u32 v4, v3, 4, v4
    s_mul_i32 s9, s5, 14
    s_add_u32 s9, s9, s7
    s_lshl_b32 s9, s9, 14
    s_add_u32 s9, s9, {L.WOF}
    v_lshlrev_b32 v5, 4, v62
    """)
    for ks in range(16):
        k(f"buffer_load_dwordx4 v[{64+4*ks}:{67+4*ks}], v4, s[48:51], s8 offen offset:{ks*32}")
    for ks in range(16):
        if ks % 4 == 0 and ks:
            k("v_add_u32 v5, 4096, v5")
        k(f"buffer_load_dwordx4 v[{128+4*ks}:{131+4*ks}], v5, s[44:47], s9 offen offset:{(ks%4)*1024}")
    for r in range(16):
        k(f"v_mov_b32 v{16+r}, 0")
    k("s_waitcnt vmcnt(0)")
    for ks in range(16):
        k(f"v_mfma_f32_32x32x16_bf16 v[16:31], v[{64+4*ks}:{67+4*ks}], v[{128+4*ks}:{131+4*ks}], v[16:31]")
    k("s_nop 15\ns_nop 3")
    for q in range(4):
        k(f"""
        v_cvt_pk_bf16_f32 v{32+2*q}, v{16+4*q}, v{17+4*q}
        v_cvt_pk_bf16_f32 v{33+2*q}, v{18+4*q}, v{19+4*q}
        """)
    k(f"""
    s_mul_i32 s10, s5, 14
    s_add_u32 s10, s10, s7
    s_add_u32 s10, s10, 256
    s_mul_i32 s10, s10, 28672
    s_lshl_b32 s11, s6, 11
    s_add_u32 s10, s10, s11
    s_add_u32 s10, s10, {L.WTF}
    v_lshlrev_b32 v6, 4, v2
    v_lshl_add_u32 v6, v3, 3, v6
    """)
    for q in range(4):
        k(f"buffer_store_dwordx2 v[{32+2*q}:{33+2*q}], v6, s[44:47], s10 offen offset:{(q>>1)*1024+(q&1)*512}")
    k.label("vo_kernel_done")
    return k, (NWG, 256, 0), dict(vgpr=192)
```

```python
S, D = 2048, 448
TILE = 28672
def al(x, a=4096): return (x + a - 1) // a * a
off = 0
def alloc(n):
    global off
    o = off
    off = al(off + n)
    return o
XN   = alloc(S * D * 2)
X    = alloc(S * D * 2)
WTF  = alloc(480 * TILE)
WOF  = alloc(16 * 14 * 16 * 1024)
WAF  = alloc(48 * TILE)
WOAF = alloc(14 * 32 * 1024)
QKA  = alloc(64 * 2 * 16 * 2048)
VA   = alloc(64 * 16 * 2048)
OA   = alloc(64 * 16 * 2048)
QKB  = alloc(64 * 256 * 2048)
VOX  = alloc(64 * 224 * 2048)
KM   = alloc(64 * 65536)
UM   = alloc(64 * 8 * 14 * 1024)
MBOX = alloc(2 * 64 * 8192)
PBOX = alloc(2 * 64 * 10240)
BOXEND = off
WS_BYTES = 268435456
assert off <= WS_BYTES
```

```python
import sys
sys.path.insert(0, 'gen')
from asm import *
import layout as L
import k_prep, k_a, k_b1, k_b2, k_b3
NAME = "interleave_layers__sliding_block__memory_aug_recurrent_mem_tr__prompt"
def build(order, kerns, path):
    hdr = []
    for (kn, (g, b, lds)) in order:
        hdr.append(f"; @launch kernel={kn} grid=({g},1,1) block=({b},1,1) lds={lds}")
    body = ['.amdgcn_target "amdgcn-amd-amdhsa--gfx950"']
    descs = []
    for k, opts in kerns:
        t, d = k.text(**opts)
        body.append(t); descs.append(d)
    open(path, 'w').write('\n'.join(hdr) + '\n' + '\n'.join(body) + '\n'.join(descs))
if __name__ == '__main__':
    kerns = []; order = []
    def add(gen, *a, launch=True):
        k, l, o = gen(*a)
        kerns.append((k, o))
        if launch: order.append((k.name, l))
        return (k.name, l)
    add(k_prep.gen_prep)
    add(k_prep.gen_vo)
    ka1 = add(k_a.gen_ka1)
    ka2 = add(k_a.gen_ka2)
    add(k_a.gen_ka3, True)
    kb1 = add(k_b1.gen_kb1)
    add(k_b2.gen_kb2, 0)
    add(k_b3.gen_kb3, False)
    order.append(ka1); order.append(ka2)
    add(k_a.gen_ka3, False)
    order.append(kb1)
    add(k_b2.gen_kb2, 1)
    add(k_b3.gen_kb3, True)
    build(order, kerns, f'cdna_kernels/{NAME}.s')
```

```python
from asm import *
import layout as L
from k_a import f32hex
import math
BIG = 0x7FFFFF00
MAXPOLL = 2000000
LAG5 = 20
DIAG = False

LDS_MS = 131072
LDS_EX = 131072 + 8192
LDS_UL = LDS_EX + 12288
LDS_ROLE = LDS_UL + 8192
LDS_TOTAL = LDS_ROLE + 64
SC = " sc1"

def gen_mega():
    name = "mega_kernel"
    k = Kern(name)
    NWG = 256
    done = name + "_done"
    k(f"s_cmp_ge_u32 s2, {NWG}")
    k(f"s_cbranch_scc1 {done}")
    load_args(k)
    k("""
    v_lshrrev_b32 v1, 6, v0
    v_and_b32 v62, 63, v0          ; lane
    s_nop 0
    v_readfirstlane_b32 s3, v1     ; wave
    s_getreg_b32 s4, hwreg(HW_REG_XCC_ID)
    s_and_b32 s4, s4, 7
    s_waitcnt lgkmcnt(0)
    """)
    srd(k, 44, P_WS, L.WS_BYTES)
    srd(k, 48, P_DBG, 256)
    srd(k, 52, P_OUT, 2048 * 448 * 2)
    lel, lpoll, lgot, lout, lslow, lw, lc2 = [k.lab(x) for x in ("el", "poll", "got", "out", "slow", "w", "c2")]
    k(f"""
    s_cmp_lg_u32 s3, 0
    s_cbranch_scc1 {lel}
    s_mov_b64 s[6:7], exec
    s_mov_b64 exec, 1
    v_mov_b32 v8, 1
    s_lshl_b32 s5, s4, 2
    v_mov_b32 v9, s5
    buffer_atomic_add v8, v9, s[48:51], 0 offen sc0
    s_waitcnt vmcnt(0)
    v_readfirstlane_b32 s8, v8     ; r
    s_cmp_lg_u32 s8, 31
    s_cbranch_scc1 {lgot}
    s_add_u32 s5, s4, 1
    v_mov_b32 v10, s5
    v_mov_b32 v11, 0
    v_mov_b32 v9, 64
    buffer_atomic_cmpswap v[10:11], v9, s[48:51], 0 offen sc0
    s_waitcnt vmcnt(0)
    v_readfirstlane_b32 s10, v10
    s_cmp_eq_u32 s10, 0
    s_cbranch_scc1 {lgot}
    v_mov_b32 v10, s5
    v_mov_b32 v11, 0
    v_mov_b32 v9, 72
    buffer_atomic_cmpswap v[10:11], v9, s[48:51], 0 offen sc0
    s_waitcnt vmcnt(0)
    """)
    k.label(lgot)
    k(f"""
    v_mov_b32 v8, 1
    v_mov_b32 v9, 68
    buffer_atomic_add v8, v9, s[48:51], 0 offen sc0
    s_waitcnt vmcnt(0)
    v_readfirstlane_b32 s9, v8     ; g
    s_mov_b32 s12, 0
    """)
    k.label(lpoll)
    k(f"""
    v_mov_b32 v9, 68
    v_mov_b32 v8, 0
    buffer_atomic_add v8, v9, s[48:51], 0 offen sc0
    s_waitcnt vmcnt(0)
    v_mov_b32 v9, 72
    v_mov_b32 v10, 0
    buffer_atomic_add v10, v9, s[48:51], 0 offen sc0
    v_mov_b32 v9, 64
    v_mov_b32 v11, 0
    buffer_atomic_add v11, v9, s[48:51], 0 offen sc0
    s_waitcnt vmcnt(0)
    v_readfirstlane_b32 s10, v10   ; winner2
    v_readfirstlane_b32 s11, v8    ; total
    v_readfirstlane_b32 s14, v11   ; winner1
    s_cmp_lg_u32 s10, 0
    s_cbranch_scc1 {lout}
    s_cmp_ge_u32 s11, {NWG}
    s_cbranch_scc1 {lout}
    s_add_u32 s12, s12, 1
    s_cmp_lt_u32 s12, {MAXPOLL}
    s_cbranch_scc1 {lpoll}
    """)
    k.label(lout)
    k(f"""
    s_mov_b32 s13, 255
    s_cmp_eq_u32 s10, 0
    s_cbranch_scc1 {lslow}
    s_cmp_ge_u32 s8, 32
    s_cbranch_scc1 {lw}
    s_add_u32 s5, s4, 1
    s_cmp_eq_u32 s5, s10
    s_cbranch_scc1 {lc2}
    s_cmp_lg_u32 s5, s14
    s_cbranch_scc1 {lw}
    s_mov_b32 s13, s8
    s_branch {lw}
    """)
    k.label(lc2)
    k(f"s_add_u32 s13, s8, 32\ns_branch {lw}")
    k.label(lslow)
    k(f"""
    s_cmp_ge_u32 s9, 64
    s_cbranch_scc1 {lw}
    s_add_u32 s13, s9, 64
    """)
    k.label(lw)
    k(f"""
    v_mov_b32 v8, s13
    v_mov_b32 v9, {LDS_ROLE}
    ds_write_b32 v9, v8
    s_waitcnt lgkmcnt(0)
    s_mov_b64 exec, s[6:7]
    """)
    k.label(lel)
    lworker = k.lab("worker")
    k(f"""
    s_barrier
    v_mov_b32 v9, {LDS_ROLE}
    ds_read_b32 v8, v9
    s_waitcnt lgkmcnt(0)
    v_readfirstlane_b32 s13, v8
    s_nop 3
    s_cmp_eq_u32 s13, 255
    s_cbranch_scc1 {lworker}
    """)
    chain(k, done)
    k.label(lworker)
    import k_mega2
    k_mega2.worker(k, done)
    k.label(done)
    return k, (NWG, 256, LDS_TOTAL), dict(vgpr=256, accum=256, agpr=256)

def poll_flag(k, saddr, thresh, tmpv=8):
    lp, lo = k.lab("fp"), k.lab("fo")
    k(f"s_mov_b32 s12, 0\nv_mov_b32 v{tmpv+1}, 0")
    k.label(lp)
    k(f"""
    buffer_load_dword v{tmpv}, v{tmpv+1}, s[44:47], s{saddr} offen sc1
    s_waitcnt vmcnt(0)
    v_readfirstlane_b32 s33, v{tmpv}
    s_cmp_ge_u32 s33, {thresh}
    s_cbranch_scc1 {lo}
    s_sleep 2
    s_add_u32 s12, s12, 1
    s_cmp_lt_u32 s12, {MAXPOLL}
    s_cbranch_scc1 {lp}
    """)
    k.label(lo)

def signal(k, saddr, barrier=True):
    l = k.lab("sg")
    if barrier:
        k("s_waitcnt vmcnt(0)\ns_barrier")
    k(f"""
    s_cmp_lg_u32 s3, 0
    s_cbranch_scc1 {l}
    s_mov_b64 s[34:35], exec
    s_mov_b64 exec, 1
    v_mov_b32 v8, 1
    v_mov_b32 v9, 0
    buffer_atomic_add v8, v9, s[44:47], s{saddr} offen
    s_mov_b64 exec, s[34:35]
    """)
    k.label(l)

def chain(k, done):
    k(f"""
    v_and_b32 v2, 15, v62          ; n / m
    v_lshrrev_b32 v3, 4, v62       ; g
    s_lshr_b32 s29, s13, 6
    s_bfe_u32 s31, s13, 0x10005
    s_lshl_b32 s30, s31, 19
    s_add_u32 s30, s30, {L.MBOX}
    s_mul_i32 s36, s31, 655360
    s_add_u32 s36, s36, {L.PBOX}
    s_lshl_b32 s32, s31, 14
    s_and_b32 s5, s13, 31
    s_lshl_b32 s5, s5, 2
    s_add_u32 s32, s32, s5
    s_add_u32 s32, s32, {L.FL(L.F_C) - 256}    ; +256*s20 -> C[s-1][role]
    v_lshlrev_b32 v50, 4, v0
    v_add_u32 v51, 4096, v50                 ; chunk1
    v_mov_b32 v8, {BIG}
    v_cmp_gt_u32 vcc, 192, v0
    s_nop 1
    v_cndmask_b32 v51, v8, v51, vcc
    v_cndmask_b32 v54, -1, 0, vcc
    v_mul_u32_u24 v9, 1171, v0
    v_lshrrev_b32 v9, 16, v9
    v_mul_u32_u24 v10, 56, v9
    v_sub_u32 v10, v0, v10
    v_mul_u32_u24 v52, 912, v9
    v_lshl_add_u32 v52, v10, 4, v52
    v_add_u32 v52, {LDS_MS}, v52
    v_add_u32 v11, 256, v0
    v_mul_u32_u24 v9, 1171, v11
    v_lshrrev_b32 v9, 16, v9
    v_mul_u32_u24 v10, 56, v9
    v_sub_u32 v10, v11, v10
    v_mul_u32_u24 v53, 912, v9
    v_lshl_add_u32 v53, v10, 4, v53
    v_add_u32 v53, {LDS_MS}, v53
    v_mov_b32 v8, {LDS_ROLE+16}
    v_cndmask_b32 v53, v8, v53, vcc
    v_and_b32 v9, 7, v2
    v_mul_u32_u24 v55, 912, v9
    v_lshl_add_u32 v55, v3, 4, v55
    v_add_u32 v55, {LDS_MS}, v55
    v_lshlrev_b32 v56, 4, v62
    s_lshl_b32 s14, s3, 15
    v_add_u32 v57, s14, v56
    """)
    l_p2 = k.lab("p2")
    k(f"""
    s_and_b32 s5, s13, 16
    s_cmp_lg_u32 s5, 0
    s_cbranch_scc1 {l_p2}
    """)
    def stamp(i):
        if DIAG:
            k(f"s_memtime s[{70+2*i}:{71+2*i}]")
            if i == 0: k("s_memrealtime s[82:83]")
    def dump(n):
        if DIAG:
            k(f"""
            s_waitcnt lgkmcnt(0)
            s_and_b32 s90, s13, 63
            s_lshl_b32 s90, s90, 12
            s_lshl_b32 s91, s20, 6
            s_add_u32 s90, s90, s91
            s_add_u32 s90, s90, {L.BOXEND}
            """)
            for i in range(n):
                k(f"v_mov_b32 v6, s{70+2*i}\nv_mov_b32 v7, {4*i}\nbuffer_store_dword v6, v7, s[44:47], s90 offen")

    def pub_store(instr):
        a, b = k.lab("ps"), k.lab("pe")
        k(f"s_cmp_lg_u32 s29, 0\ns_cbranch_scc1 {a}")
        for i in instr: k(i)
        k(f"s_branch {b}")
        k.label(a)
        for i in instr: k(i + " sc1")
        k.label(b)

    def gather():
        lp, lo, ls = k.lab("gp"), k.lab("go"), k.lab("gs")
        k(f"""
        s_lshl_b32 s21, s20, 13
        s_add_u32 s21, s21, s30
        s_mov_b32 s12, 0
        """)
        k.label(lp)
        k(f"""
        buffer_load_dwordx4 v[8:11], v50, s[44:47], s21 offen sc1
        buffer_load_dwordx4 v[12:15], v51, s[44:47], s21 offen sc1
        s_waitcnt vmcnt(0)
        v_or_b32 v12, v12, v54
        v_or_b32 v13, v13, v54
        v_or_b32 v14, v14, v54
        v_or_b32 v15, v15, v54
        v_min_u32 v4, v8, v9
        v_min3_u32 v4, v4, v10, v11
        v_min3_u32 v4, v4, v12, v13
        v_min3_u32 v4, v4, v14, v15
        v_cmp_eq_u32 vcc, 0, v4
        s_cbranch_vccz {lo}
        s_add_u32 s12, s12, 1
        s_cmp_lt_u32 s12, {MAXPOLL}
        s_cbranch_scc1 {lp}
        """)
        k.label(lo)
        stamp(1)
        for r in range(8, 16):
            k(f"v_xor_b32 v{r}, 0x80008000, v{r}")
        k("""
        ds_write_b128 v52, v[8:11]
        ds_write_b128 v53, v[12:15]
        s_waitcnt lgkmcnt(0)
        s_barrier
        """)
        for kk in range(14):
            k(f"ds_read_b128 v[{64+4*kk}:{67+4*kk}], v55 offset:{kk*64}")
        k(f"""
        s_cmp_lg_u32 s3, 3
        s_cbranch_scc1 {ls}
        s_cmp_eq_u32 s20, 0
        s_cbranch_scc1 {ls}
        s_lshl_b32 s33, s20, 8
        s_add_u32 s33, s33, s32
        s_mov_b64 s[34:35], exec
        s_mov_b64 exec, 1
        v_mov_b32 v8, 1
        v_mov_b32 v9, 0
        buffer_store_dword v8, v9, s[44:47], s33 offen sc1
        s_mov_b64 exec, s[34:35]
        """)
        k.label(ls)

    def final_signal():
        l = k.lab("fs")
        k(f"""
        s_waitcnt vmcnt(0)
        s_barrier
        s_cmp_lg_u32 s3, 0
        s_cbranch_scc1 {l}
        s_add_u32 s33, s32, {64*256}
        s_mov_b64 exec, 1
        v_mov_b32 v8, 1
        v_mov_b32 v9, 0
        buffer_store_dword v8, v9, s[44:47], s33 offen sc1
        """)
        k.label(l)

    def wait_d4(snext):
        import k_mega2
        k_mega2.wait_flags(k, L.F_D4, k_mega2.NG4, sreg=snext, tv=6)

    def load_weights(nfrag, locs, colreg):
        k(f"s_mov_b32 s22, {L.WTF}")
        for f in range(nfrag):
            T, kk = divmod(f, 14)
            kind, r = locs[f]
            if kk % 2 == 0:
                k(f"v_add_u32 v4, {kk*2048}, v{colreg(T)}")
            off = (kk % 2) * 2048
            if kind == 'a':
                k(f"buffer_load_dwordx4 a[{r}:{r+3}], v4, s[44:47], s22 offen offset:{off}")
            elif kind == 'v':
                k(f"buffer_load_dwordx4 v[{r}:{r+3}], v4, s[44:47], s22 offen offset:{off}")
            else:
                rr = 64 + 4 * (r % 16)
                k(f"buffer_load_dwordx4 v[{rr}:{rr+3}], v4, s[44:47], s22 offen offset:{off}")
                if r % 16 == 15 or f == nfrag - 1:
                    k("s_waitcnt vmcnt(0)")
                    for q in range(r - r % 16, r + 1):
                        rr = 64 + 4 * (q % 16)
                        k(f"ds_write_b128 v57, v[{rr}:{rr+3}] offset:{q*1024}")
                    k("s_waitcnt lgkmcnt(0)")
        k("s_waitcnt vmcnt(0) lgkmcnt(0)")

    def mm_phase(ntile, locs, accbase, weights_are_A):
        seq = [(kk, T) for kk in range(14) for T in range(ntile)]
        ldsq = [(kk, T) for (kk, T) in seq if locs[T * 14 + kk][0] == 'l']
        ring = {}
        st = dict(n=0)
        def issue():
            if st['n'] < len(ldsq):
                kk, T = ldsq[st['n']]
                r = 152 + 4 * (st['n'] % 4)
                ring[(kk, T)] = (r, st['n'])
                k(f"ds_read_b128 v[{r}:{r+3}], v57 offset:{locs[T*14+kk][1]*1024}")
                st['n'] += 1
        for _ in range(3): issue()
        first = True
        for (kk, T) in seq:
            kind, r = locs[T * 14 + kk]
            if first:
                k(f"s_waitcnt lgkmcnt({st['n']})")
                first = False
            if kind == 'l':
                rr, idx = ring[(kk, T)]
                k(f"s_waitcnt lgkmcnt({st['n'] - idx - 1})")
                W = f"v[{rr}:{rr+3}]"
            elif kind == 'a':
                W = f"a[{r}:{r+3}]"
            else:
                W = f"v[{r}:{r+3}]"
            A = accbase + 4 * T
            c = "0" if kk == 0 else f"v[{A}:{A+3}]"
            M = f"v[{64+4*kk}:{67+4*kk}]"
            if weights_are_A:
                k(f"v_mfma_f32_16x16x32_bf16 v[{A}:{A+3}], {W}, {M}, {c}")
            else:
                k(f"v_mfma_f32_16x16x32_bf16 v[{A}:{A+3}], {M}, {W}, {c}")
            if kind == 'l':
                issue()

    def locs_for(nfrag, vregs, nlds):
        locs = []
        nreg = nfrag - nlds
        for f in range(nfrag):
            if f < 64: locs.append(('a', 4 * f))
            elif f < nreg: locs.append(('v', vregs + 4 * (f - 64)))
            else: locs.append(('l', f - nreg))
        return locs

    locs = locs_for(112, 192, 32)
    k(f"""
    s_and_b32 s15, s13, 15          ; head
    v_lshrrev_b32 v8, 3, v2
    v_lshlrev_b32 v8, 4, v8
    v_bfe_u32 v9, v2, 2, 1
    v_lshl_add_u32 v8, v9, 2, v8
    v_and_b32 v9, 3, v2
    v_add_u32 v8, v8, v9
    v_mov_b32 v58, v8
    v_lshrrev_b32 v9, 1, v3
    v_lshlrev_b32 v9, 10, v9
    v_and_b32 v10, 1, v3
    v_lshl_add_u32 v9, v10, 9, v9
    v_mov_b32 v59, v9
    s_lshl_b32 s16, s15, 3
    s_lshl_b32 s17, s3, 1
    s_add_u32 s16, s16, s17
    """)
    for T in range(8):
        tt, sub, isk = (T & 3) >> 1, T & 1, T >> 2
        k(f"""
        s_add_u32 s17, s16, {isk*128+tt}
        s_mul_i32 s17, s17, 28672
        v_add_u32 v{32+T}, {8*sub}, v8
        v_lshl_add_u32 v{32+T}, v{32+T}, 4, v9
        v_add_u32 v{32+T}, s17, v{32+T}
        """)
    load_weights(112, locs, lambda T: 32 + T)
    k(f"""
    v_lshl_add_u32 v44, v58, 4, v59
    s_add_u32 s17, s16, 128
    s_lshl_b32 s17, s17, 11
    s_add_u32 s23, s17, {L.QKB}
    s_mul_i32 s17, s31, {L.QKBSZ}
    s_add_u32 s23, s23, s17
    v_lshlrev_b32 v45, 7, v3
    v_lshl_add_u32 v45, v2, 4, v45
    v_mov_b32 v8, {BIG}
    v_cmp_gt_u32 vcc, 8, v2
    s_nop 1
    v_cndmask_b32 v45, v8, v45, vcc
    s_lshl_b32 s24, s15, 12
    s_lshl_b32 s17, s3, 10
    s_add_u32 s24, s24, s17
    s_mul_i32 s17, s31, {L.KMSZ}
    s_add_u32 s24, s24, s17
    s_add_u32 s24, s24, {L.KM}
    v_mul_u32_u24 v46, 80, v2
    v_lshl_add_u32 v47, v3, 3, v46
    v_add_u32 v47, 64, v47
    v_lshl_add_u32 v46, v3, 4, v46
    v_cndmask_b32 v46, v8, v46, vcc
    v_cndmask_b32 v47, v8, v47, vcc
    v_cmp_gt_u32 s[26:27], 2, v3
    s_nop 1
    v_cndmask_b32 v47, v8, v47, s[26:27]
    s_mul_i32 s25, s15, 640
    s_add_u32 s25, s25, s36
    v_mul_u32_u24 v48, 48, v62
    s_mul_i32 s17, s3, 3072
    s_add_u32 s17, s17, {LDS_EX}
    v_add_u32 v49, s17, v48
    v_add_u32 v48, {LDS_EX}, v48
    s_mov_b32 s28, {f32hex(math.log2(math.e)/16)}
    s_mov_b32 s20, 0
    """)
    def kx_load():
        for Tsel in range(2):
            for tt in range(2):
                r = 168 + 8 * Tsel + 4 * tt
                k(f"buffer_load_dwordx4 v[{r}:{r+3}], v44, s[44:47], s23 offen offset:{tt*2048+Tsel*128} sc1")
    wait_d4(20)
    kx_load()
    lloop, lend, lnw0 = k.lab("loop"), k.lab("end"), k.lab("nw0")
    k.label(lloop)
    stamp(0)
    gather()
    stamp(2)
    mm_phase(8, locs, 120, True)
    stamp(3)
    k("s_nop 7")
    for isk in range(2):
        for tt in range(2):
            T0 = 120 + 4 * (4 * isk + 2 * tt)
            d = 16 + 8 * isk + 4 * tt
            k(f"""
            v_cvt_pk_bf16_f32 v{d}, v{T0}, v{T0+1}
            v_cvt_pk_bf16_f32 v{d+1}, v{T0+2}, v{T0+3}
            v_cvt_pk_bf16_f32 v{d+2}, v{T0+4}, v{T0+5}
            v_cvt_pk_bf16_f32 v{d+3}, v{T0+6}, v{T0+7}
            """)
    k(f"""
    buffer_store_dwordx4 v[24:27], v45, s[44:47], s24 offen sc1
    buffer_store_dwordx4 v[28:31], v45, s[44:47], s24 offen offset:512 sc1
    s_add_u32 s24, s24, 65536
    s_cmp_eq_u32 s20, 63
    s_cbranch_scc1 {lend}
    v_mfma_f32_16x16x32_bf16 v[32:35], v[24:27], v[16:19], 0
    v_mfma_f32_16x16x32_bf16 v[36:39], v[168:171], v[16:19], 0
    v_mfma_f32_16x16x32_bf16 v[40:43], v[176:179], v[16:19], 0
    v_mfma_f32_16x16x32_bf16 v[32:35], v[28:31], v[20:23], v[32:35]
    v_mfma_f32_16x16x32_bf16 v[36:39], v[172:175], v[20:23], v[36:39]
    v_mfma_f32_16x16x32_bf16 v[40:43], v[180:183], v[20:23], v[40:43]
    s_add_u32 s23, s23, 524288
    s_nop 7
    ds_write_b128 v49, v[32:35]
    ds_write_b128 v49, v[36:39] offset:16
    ds_write_b128 v49, v[40:43] offset:32
    s_waitcnt lgkmcnt(0)
    s_barrier
    s_cmp_lg_u32 s3, 0
    s_cbranch_scc1 {lnw0}
    """)
    stamp(4)
    for w in range(1, 4):
        for c in range(3):
            r = 120 + 12 * (w - 1) + 4 * c
            k(f"ds_read_b128 v[{r}:{r+3}], v48 offset:{w*3072+c*16}")
    k("s_waitcnt lgkmcnt(0)")
    for j in range(12):
        k(f"v_add_f32 v{32+j}, v{32+j}, v{120+j}\nv_add_f32 v{132+j}, v{132+j}, v{144+j}")
    for j in range(12):
        k(f"v_add_f32 v{32+j}, v{32+j}, v{132+j}")
    k("v_mov_b32 v8, 0xff800000")
    for j in range(4):
        k(f"v_cndmask_b32 v{32+j}, v8, v{32+j}, s[26:27]")
    k("""
    v_max3_f32 v8, v32, v33, v34
    v_max3_f32 v9, v35, v36, v37
    v_max3_f32 v10, v38, v39, v40
    v_max3_f32 v11, v41, v42, v43
    v_max_f32 v8, v8, v9
    v_max_f32 v10, v10, v11
    v_max_f32 v8, v8, v10
    v_mov_b32 v9, v8
    s_nop 1
    v_permlane16_swap_b32 v8, v9
    s_nop 1
    v_max_f32 v8, v8, v9
    v_mov_b32 v9, v8
    s_nop 1
    v_permlane32_swap_b32 v8, v9
    s_nop 1
    v_max_f32 v8, v8, v9
    v_mul_f32 v8, s28, v8
    """)
    for j in range(12):
        k(f"v_fma_f32 v{32+j}, v{32+j}, s28, -v8")
    for j in range(12):
        k(f"v_exp_f32 v{32+j}, v{32+j}")
    k("""
    s_nop 0
    v_add_f32 v8, v32, v33
    v_add_f32 v9, v34, v35
    v_add_f32 v10, v36, v37
    v_add_f32 v11, v38, v39
    v_add_f32 v8, v8, v40
    v_add_f32 v9, v9, v41
    v_add_f32 v10, v10, v42
    v_add_f32 v11, v11, v43
    v_add_f32 v8, v8, v9
    v_add_f32 v10, v10, v11
    v_add_f32 v8, v8, v10
    v_mov_b32 v9, v8
    s_nop 1
    v_permlane16_swap_b32 v8, v9
    s_nop 1
    v_add_f32 v8, v8, v9
    v_mov_b32 v9, v8
    s_nop 1
    v_permlane32_swap_b32 v8, v9
    s_nop 1
    v_add_f32 v8, v8, v9
    v_rcp_f32 v8, v8
    s_nop 0
    """)
    for j in range(12):
        k(f"v_mul_f32 v{32+j}, v{32+j}, v8")
    for j in range(6):
        k(f"v_cvt_pk_bf16_f32 v{8+j}, v{32+2*j}, v{33+2*j}")
    for j in range(6):
        k(f"v_or_b32 v{8+j}, 0x80008000, v{8+j}")
    pub_store(["buffer_store_dwordx4 v[10:13], v46, s[44:47], s25 offen",
               "buffer_store_dwordx2 v[8:9], v47, s[44:47], s25 offen"])
    stamp(5)
    dump(7)
    k.label(lnw0)
    k("s_add_u32 s25, s25, 10240\ns_add_u32 s20, s20, 1")
    wait_d4(20)
    kx_load()
    k(f"s_branch {lloop}")
    k.label(lend)
    final_signal()
    k(f"s_branch {done}")

    k.label(l_p2)
    locs = locs_for(98, 232, 28)
    k(f"""
    s_and_b32 s15, s13, 15          ; slice
    s_mul_i32 s16, s15, 28          ; c0
    v_lshrrev_b32 v9, 1, v3
    v_lshlrev_b32 v9, 10, v9
    v_and_b32 v10, 1, v3
    v_lshl_add_u32 v9, v10, 9, v9
    v_mov_b32 v59, v9
    s_lshl_b32 s17, s3, 2
    v_mov_b32 v60, {BIG}
    v_cmp_gt_u32 s[26:27], 2, v3
    """)
    for T in range(7):
        k(f"""
        v_add_u32 v8, {16*T}, v2
        v_mul_u32_u24 v10, 2341, v8
        v_lshrrev_b32 v10, 16, v10
        v_mul_u32_u24 v11, 28, v10
        v_sub_u32 v11, v8, v11
        v_add_u32 v10, s17, v10
        v_add_u32 v11, s16, v11
        v_mul_u32_u24 v12, 448, v10
        v_add_u32 v12, v12, v11
        v_lshrrev_b32 v13, 5, v12
        v_add_u32 v13, 256, v13
        v_mul_u32_u24 v13, 28672, v13
        v_and_b32 v14, 31, v12
        v_lshl_add_u32 v13, v14, 4, v13
        v_add_u32 v{32+T}, v13, v9
        v_lshrrev_b32 v13, 1, v10
        v_mul_u32_u24 v13, 14336, v13
        v_lshrrev_b32 v14, 5, v11
        v_lshl_add_u32 v13, v14, 10, v13
        v_and_b32 v14, 31, v11
        v_lshl_add_u32 v14, v3, 5, v14
        v_lshl_add_u32 v13, v14, 4, v13
        v_and_b32 v14, 1, v10
        v_lshl_add_u32 v13, v14, 3, v13
        v_cndmask_b32 v{40+T}, v60, v13, s[26:27]
        """)
    load_weights(98, locs, lambda T: 32 + T)
    for hl in range(4):
        for ct in range(2):
            k(f"""
            s_add_u32 s18, s17, {hl}
            s_mul_i32 s18, s18, 448
            s_add_u32 s18, s18, s16
            s_add_u32 s18, s18, {16*ct}
            v_add_u32 v8, s18, v2
            v_lshrrev_b32 v10, 5, v8
            v_lshlrev_b32 v10, 11, v10
            v_and_b32 v11, 31, v8
            v_lshl_add_u32 v10, v11, 4, v10
            v_add_u32 v{24+2*hl+ct}, v10, v59
            """)
    k(f"""
    s_mul_i32 s23, s31, {L.VOXSZ}
    s_add_u32 s23, s23, {L.VOX}
    s_mul_i32 s24, s31, {L.UMSZ}
    s_add_u32 s24, s24, {L.UM}
    s_lshl_b32 s18, s3, 11
    s_add_u32 s18, s18, {LDS_UL}
    v_lshlrev_b32 v47, 4, v2
    v_lshl_add_u32 v47, v3, 3, v47
    v_add_u32 v47, s18, v47
    v_mov_b32 v8, {LDS_ROLE+32}
    v_cndmask_b32 v47, v8, v47, s[26:27]
    v_mul_u32_u24 v48, 28, v3
    v_add_u32 v48, v48, v2
    v_lshlrev_b32 v48, 4, v48
    v_add_u32 v48, s18, v48
    v_and_b32 v8, 7, v2
    v_mul_u32_u24 v49, 80, v8
    v_mul_u32_u24 v9, 640, v3
    v_add_u32 v61, v49, v9
    v_add_u32 v61, 64, v61
    v_lshl_add_u32 v49, v3, 4, v49
    s_mul_i32 s25, s3, 2560
    s_add_u32 s25, s25, s36
    v_lshlrev_b32 v22, 5, v62
    v_lshlrev_b32 v8, 11, v1
    v_add_u32 v23, v22, v8
    v_add_u32 v23, {LDS_EX}, v23
    v_add_u32 v22, {LDS_EX}, v22
    v_mul_u32_u24 v21, 896, v2
    v_lshl_add_u32 v21, v3, 3, v21
    s_mul_i32 s18, s15, 56
    v_add_u32 v21, s18, v21
    v_cmp_gt_u32 vcc, 8, v2
    s_nop 1
    v_cndmask_b32 v21, v60, v21, vcc
    v_cmp_gt_u32 vcc, 3, v3
    s_nop 1
    v_cndmask_b32 v20, v60, v21, vcc
    s_mov_b32 s20, 0
    """)
    def vox_load():
        for j in range(8):
            k(f"buffer_load_dwordx4 v[{168+4*j}:{171+4*j}], v{24+j}, s[44:47], s23 offen sc1")
    wait_d4(20)
    vox_load()
    lloop, lend, lnw0, lp, lo = k.lab("loop"), k.lab("end"), k.lab("nw0"), k.lab("pp"), k.lab("po")
    k.label(lloop)
    stamp(0)
    gather()
    stamp(2)
    mm_phase(7, locs, 120, False)
    stamp(3)
    k("s_nop 7")
    for T in range(7):
        A = 120 + 4 * T
        k(f"""
        v_cvt_pk_bf16_f32 v{A}, v{A}, v{A+1}
        v_cvt_pk_bf16_f32 v{A+1}, v{A+2}, v{A+3}
        ds_write_b64 v47, v[{A}:{A+1}] offset:{T*256}
        buffer_store_dwordx2 v[{A}:{A+1}], v{40+T}, s[44:47], s24 offen sc1
        """)
    k(f"""
    s_add_u32 s24, s24, 114688
    s_cmp_eq_u32 s20, 63
    s_cbranch_scc1 {lend}
    s_waitcnt lgkmcnt(0)
    ds_read_b128 v[220:223], v48
    ds_read_b128 v[224:227], v48 offset:256
    s_mov_b32 s12, 0
    """)
    k.label(lp)
    for hl in range(4):
        k(f"buffer_load_dwordx4 v[{200+4*hl}:{203+4*hl}], v49, s[44:47], s25 offen offset:{hl*640} sc1")
    k(f"""
    buffer_load_dwordx4 v[216:219], v61, s[44:47], s25 offen sc1
    s_waitcnt vmcnt(0)
    v_and_b32 v4, v200, v201
    """)
    for r in range(202, 220, 2):
        k(f"v_and_b32 v4, v4, v{r}\nv_and_b32 v4, v4, v{r+1}")
    k(f"""
    v_and_b32 v4, 0x80008000, v4
    v_cmp_ne_u32 vcc, 0x80008000, v4
    s_cbranch_vccz {lo}
    s_add_u32 s12, s12, 1
    s_cmp_lt_u32 s12, {MAXPOLL}
    s_cbranch_scc1 {lp}
    """)
    k.label(lo)
    stamp(4)
    k("s_waitcnt lgkmcnt(0)")
    for ct in range(2):
        k(f"v_mfma_f32_16x16x32_bf16 v[{8+4*ct}:{11+4*ct}], v[{220+4*ct}:{223+4*ct}], v[216:219], 0")
    for hl in range(4):
        for ct in range(2):
            r = 168 + 4 * (2 * hl + ct)
            k(f"v_mfma_f32_16x16x32_bf16 v[{8+4*ct}:{11+4*ct}], v[{r}:{r+3}], v[{200+4*hl}:{203+4*hl}], v[{8+4*ct}:{11+4*ct}]")
    k(f"""
    s_add_u32 s23, s23, 458752
    s_add_u32 s25, s25, 10240
    s_nop 7
    ds_write_b128 v23, v[8:11]
    ds_write_b128 v23, v[12:15] offset:16
    s_waitcnt lgkmcnt(0)
    s_barrier
    s_cmp_lg_u32 s3, 0
    s_cbranch_scc1 {lnw0}
    """)
    for w in range(1, 4):
        for c in range(2):
            r = 120 + 8 * (w - 1) + 4 * c
            k(f"ds_read_b128 v[{r}:{r+3}], v22 offset:{w*2048+c*16}")
    k("s_waitcnt lgkmcnt(0)")
    for j in range(8):
        k(f"v_add_f32 v{8+j}, v{8+j}, v{120+j}\nv_add_f32 v{128+j}, v{128+j}, v{136+j}")
    for j in range(8):
        k(f"v_add_f32 v{8+j}, v{8+j}, v{128+j}")
    for j in range(8):
        k(f"v_sub_f32 v{8+j}, 0, v{8+j}")
    k("v_mov_b32 v5, 0x80008000")
    for j in range(4):
        k(f"v_cvt_pk_bf16_f32 v{8+j}, v{8+2*j}, v{9+2*j}")
    for j in range(4):
        k(f"v_xor_b32 v{8+j}, v5, v{8+j}")
    for j in range(4):
        k(f"v_max_u32 v{8+j}, 1, v{8+j}")
    k(f"""
    s_add_u32 s21, s20, 1
    s_lshl_b32 s21, s21, 13
    s_add_u32 s21, s21, s30
    """)
    pub_store(["buffer_store_dwordx2 v[8:9], v21, s[44:47], s21 offen",
               "buffer_store_dwordx2 v[10:11], v20, s[44:47], s21 offen offset:32"])
    stamp(5)
    dump(7)
    k.label(lnw0)
    k("s_add_u32 s20, s20, 1")
    wait_d4(20)
    vox_load()
    k(f"s_branch {lloop}")
    k.label(lend)
    final_signal()
    k(f"s_branch {done}")

def tstamp(k, i):
    if DIAG: k(f"s_memrealtime s[{84+2*i}:{85+2*i}]")
def tdump(k):
    if DIAG:
        k(f"""
        s_memrealtime s[88:89]
        s_waitcnt lgkmcnt(0)
        s_lshl_b32 s90, s94, 4
        s_add_u32 s90, s90, {L.BOXEND + 64*4096}
        v_mov_b32 v8, s84
        v_mov_b32 v9, s86
        v_mov_b32 v10, s88
        v_mov_b32 v11, s2
        v_mov_b32 v12, 0
        buffer_store_dwordx4 v[8:11], v12, s[44:47], s90 offen
        """)
def worker(k, done):
    from k_tasks import task_kb3, task_qkv, task_attn, task_oproj, task_kb1
    lloop = k.lab("wl")
    NQ = 16 + (LAG5 + 3) // 4
    k("""
    v_and_b32 v2, 31, v62
    v_lshrrev_b32 v3, 5, v62
    v_lshlrev_b32 v5, 4, v62
    """)
    k.label(lloop)
    l1 = k.lab("w1")
    k(f"""
    s_barrier
    s_cmp_lg_u32 s3, 0
    s_cbranch_scc1 {l1}
    s_mov_b64 s[34:35], exec
    s_mov_b64 exec, 1
    v_mov_b32 v8, 1
    v_mov_b32 v9, 128
    buffer_atomic_add v8, v9, s[48:51], 0 offen sc0
    v_mov_b32 v9, {LDS_ROLE}
    s_waitcnt vmcnt(0)
    ds_write_b32 v9, v8
    s_waitcnt lgkmcnt(0)
    s_mov_b64 exec, s[34:35]
    """)
    k.label(l1)
    lt4, lt1, lt2, lt3, lt3b, lt5 = [k.lab(x) for x in ("t4", "t1", "t2", "t3", "t3b", "t5")]
    k(f"""
    s_barrier
    v_mov_b32 v9, {LDS_ROLE}
    ds_read_b32 v8, v9
    s_waitcnt lgkmcnt(0)
    v_readfirstlane_b32 s6, v8          ; ticket
    s_nop 3
    s_mov_b32 s94, s6
    """)
    tstamp(k, 0)
    k(f"""
    s_mul_hi_u32 s7, s6, {(1<<32)//108+1}   ; q
    s_mul_i32 s8, s7, 108
    s_sub_u32 s8, s6, s8                ; r
    s_cmp_ge_u32 s7, {NQ}
    s_cbranch_scc1 {done}
    s_cmp_ge_u32 s8, 76
    s_cbranch_scc1 {lt4}
    s_mul_i32 s9, s8, 27595
    s_lshr_b32 s9, s9, 19               ; j = r/19
    s_mul_i32 s10, s9, 19
    s_sub_u32 s10, s8, s10              ; slot
    s_lshl_b32 s4, s7, 2
    s_add_u32 s4, s4, s9                ; seg
    s_cmp_eq_u32 s10, 18
    s_cbranch_scc1 {lt5}
    s_cmp_ge_u32 s4, 64
    s_cbranch_scc1 {lloop}
    s_cmp_eq_u32 s10, 0
    s_cbranch_scc1 {lt1}
    s_cmp_eq_u32 s10, 17
    s_cbranch_scc1 {lt3b}
    s_cmp_ge_u32 s10, 13
    s_cbranch_scc1 {lt3}
    """)
    k("s_sub_u32 s5, s10, 1")
    k(f"s_lshl_b32 s37, s4, 2\ns_add_u32 s37, s37, {L.F_D1}")
    poll_flag(k, 37, 1)
    tstamp(k, 1)
    task_qkv(k)
    k(f"s_lshl_b32 s37, s4, 2\ns_add_u32 s37, s37, {L.F_D2}")
    signal(k, 37)
    tdump(k)
    k(f"s_branch {lloop}")
    k.label(lt3)
    k("s_sub_u32 s5, s10, 13")
    lp, lo = k.lab("fp"), k.lab("fo")
    k(f"""
    v_add_u32 v9, s4, v62
    v_subrev_u32 v9, 8, v9
    v_lshlrev_b32 v10, 2, v9
    v_mov_b32 v11, {BIG}
    v_cmp_le_i32 vcc, 0, v9
    v_cmp_gt_u32 s[34:35], 9, v62
    s_and_b64 vcc, vcc, s[34:35]
    s_nop 1
    v_cndmask_b32 v10, v11, v10, vcc
    v_cndmask_b32 v11, 0, 12, vcc       ; expected
    s_mov_b32 s12, 0
    s_mov_b32 s37, {L.F_D2}
    """)
    k.label(lp)
    k(f"""
    buffer_load_dword v8, v10, s[44:47], s37 offen sc1
    s_waitcnt vmcnt(0)
    v_cmp_lt_u32 vcc, v8, v11
    s_cbranch_vccz {lo}
    s_sleep 2
    s_add_u32 s12, s12, 1
    s_cmp_lt_u32 s12, {MAXPOLL}
    s_cbranch_scc1 {lp}
    """)
    k.label(lo)
    tstamp(k, 1)
    task_attn(k)
    k(f"s_lshl_b32 s37, s4, 2\ns_add_u32 s37, s37, {L.F_D3}")
    signal(k, 37)
    tdump(k)
    k(f"s_branch {lloop}")
    k.label(lt3b)
    k(f"s_lshl_b32 s37, s4, 2\ns_add_u32 s37, s37, {L.F_D3}")
    poll_flag(k, 37, 4)
    tstamp(k, 1)
    task_oproj(k)
    k(f"s_lshl_b32 s37, s4, 2\ns_add_u32 s37, s37, {L.F_D3B}")
    signal(k, 37)
    tdump(k)
    k(f"s_branch {lloop}")
    k.label(lt1)
    k(f"s_lshl_b32 s37, s4, 2\ns_add_u32 s37, s37, {L.F_C1}")
    poll_flag(k, 37, 32)
    tstamp(k, 1)
    task_kb3(k, 0)
    k(f"s_lshl_b32 s37, s4, 2\ns_add_u32 s37, s37, {L.F_D1}")
    signal(k, 37)
    tdump(k)
    k(f"s_branch {lloop}")
    k.label(lt5)
    k(f"""
    s_cmp_lt_u32 s4, {LAG5}
    s_cbranch_scc1 {lloop}
    s_sub_u32 s4, s4, {LAG5}
    s_cmp_ge_u32 s4, 64
    s_cbranch_scc1 {lloop}
    s_lshl_b32 s37, s4, 2
    s_add_u32 s37, s37, {L.F_C2}
    """)
    poll_flag(k, 37, 32)
    tstamp(k, 1)
    task_kb3(k, 1)
    tdump(k)
    k(f"s_branch {lloop}")
    k.label(lt4)
    k(f"""
    s_cmp_ge_u32 s7, 16
    s_cbranch_scc1 {lloop}
    s_mov_b32 s4, s7
    s_sub_u32 s5, s8, 76
    s_lshl_b32 s37, s4, 4
    s_lshl_b32 s38, s3, 2
    s_add_u32 s37, s37, s38
    s_add_u32 s37, s37, {L.F_D3B}
    """)
    poll_flag(k, 37, 1)
    tstamp(k, 1)
    task_kb1(k)
    k(f"s_lshl_b32 s37, s4, 2\ns_add_u32 s37, s37, {L.F_D4}")
    signal(k, 37)
    tdump(k)
    k(f"s_branch {lloop}")
```

```python
from asm import *
import layout as L
from k_a import f32hex
import math
import k_mega
from k_mega import BIG, MAXPOLL, LDS_MS, LDS_EX, LDS_UL, LDS_ROLE, LDS_TOTAL
SC = " sc1"
NG4, NG2, NT3, NG3, NS, NZ = 60, 6, 8, 4, 8, 8
PER = NG4 + NG2 + NT3 + NG3 + NS + NZ

def tstamp(k, i):
    if k_mega.DIAG: k(f"s_memrealtime s[{84+2*i}:{85+2*i}]")
def tdump(k):
    if k_mega.DIAG:
        k(f"""
        s_memrealtime s[90:91]
        s_waitcnt lgkmcnt(0)
        s_lshl_b32 s92, s94, 10
        s_lshl_b32 s93, s20, 4
        s_add_u32 s92, s92, s93
        s_add_u32 s92, s92, {L.BOXEND + 64*4096}
        v_mov_b32 v8, s84
        v_mov_b32 v9, s86
        v_mov_b32 v10, s88
        v_mov_b32 v11, s90
        v_mov_b32 v12, 0
        buffer_store_dwordx4 v[8:11], v12, s[44:47], s92 offen
        """)

def wait_flags(k, stage, n, dl=0, sreg=20, tv=8):
    lp, lo = k.lab("fp"), k.lab("fo")
    k(f"""
    s_lshl_b32 s37, s{sreg}, 8
    s_lshl_b32 s33, s31, 14
    s_add_u32 s37, s37, s33
    s_add_u32 s37, s37, {L.FL(stage) + dl * 16384}
    v_lshlrev_b32 v{tv+1}, 2, v62
    v_cmp_gt_u32 s[38:39], {n}, v62
    s_mov_b32 s12, 0
    """)
    k.label(lp)
    k(f"""
    buffer_load_dword v{tv}, v{tv+1}, s[44:47], s37 offen sc1
    s_waitcnt vmcnt(0)
    v_cmp_eq_u32 vcc, 0, v{tv}
    s_and_b64 s[40:41], vcc, s[38:39]
    s_cbranch_scc0 {lo}
    s_sleep 1
    s_add_u32 s12, s12, 1
    s_cmp_lt_u32 s12, {MAXPOLL}
    s_cbranch_scc1 {lp}
    """)
    k.label(lo)

def set_flag(k, stage, idx_sreg, dl=0):
    l = k.lab("sf")
    k(f"""
    s_waitcnt vmcnt(0)
    s_barrier
    s_cmp_lg_u32 s3, 0
    s_cbranch_scc1 {l}
    s_lshl_b32 s37, s20, 8
    s_lshl_b32 s33, s31, 14
    s_add_u32 s37, s37, s33
    s_lshl_b32 s33, s{idx_sreg}, 2
    s_add_u32 s37, s37, s33
    s_add_u32 s37, s37, {L.FL(stage) + dl * 16384}
    s_mov_b64 s[34:35], exec
    s_mov_b64 exec, 1
    v_mov_b32 v8, 1
    v_mov_b32 v9, 0
    buffer_store_dword v8, v9, s[44:47], s37 offen sc1
    s_mov_b64 exec, s[34:35]
    """)
    k.label(l)

def load_xn(k):
    k(f"""
    s_mul_i32 s6, s20, 28672
    s_add_u32 s6, s6, s26
    s_mul_i32 s7, s3, 7168
    s_add_u32 s6, s6, s7
    s_mul_i32 s8, s20, 3584
    s_add_u32 s8, s8, s27
    v_add_u32 v4, 4096, v5
    """)
    for j in range(7):
        k(f"buffer_load_dwordx4 v[{64+4*j}:{67+4*j}], v{5 if j < 4 else 4}, s[44:47], s6 offen offset:{(j%4)*1024}{SC}")
    for t in range(7):
        k(f"buffer_load_dwordx2 v[{100+2*t}:{101+2*t}], v61, s[44:47], s8 offen offset:{t*256}{SC}")
    k("s_waitcnt vmcnt(0)")
    for t in range(1, 7):
        k(f"v_add_f32 v100, v100, v{100+2*t}\nv_add_f32 v101, v101, v{101+2*t}")
    k("""
    v_mov_b32 v102, v100
    v_mov_b32 v103, v101
    s_nop 1
    v_permlane32_swap_b32 v100, v102
    v_permlane32_swap_b32 v101, v103
    s_nop 1
    v_add_f32 v100, v100, v102
    v_add_f32 v101, v101, v103
    v_mul_f32 v100, 0x3b124925, v100
    v_mul_f32 v101, 0x3b124925, v101
    v_fma_f32 v101, -v100, v100, v101
    v_max_f32 v101, 0, v101
    v_add_f32 v101, 0x3727c5ac, v101
    v_rsq_f32 v101, v101
    s_nop 0
    v_mul_f32 v100, v100, v101
    """)
    for d in range(28):
        r = 64 + d
        k(f"""
        v_lshlrev_b32 v104, 16, v{r}
        v_and_b32 v105, 0xffff0000, v{r}
        v_fma_f32 v104, v104, v101, -v100
        v_fma_f32 v105, v105, v101, -v100
        v_cvt_pk_bf16_f32 v{r}, v104, v105
        """)
    k("v_add_u32 v4, s7, v5")
    for j in range(7):
        k(f"ds_write_b128 v4, v[{64+4*j}:{67+4*j}] offset:{j*1024}")
    k("s_waitcnt lgkmcnt(0)\ns_barrier")

def gemm_stage(k, done, is_b):
    wbase = L.WTF if is_b else L.WAF
    nqk = 256 if is_b else 32
    k(f"""
    s_lshl_b32 s16, s15, 3
    s_lshl_b32 s17, s3, 1
    s_add_u32 s16, s16, s17            ; t0
    s_mul_i32 s17, s16, 28672
    s_add_u32 s17, s17, {wbase}
    s_add_u32 s18, s17, 28672
    v_mul_u32_u24 v61, 1792, v3
    v_lshl_add_u32 v61, v2, 3, v61
    """)
    for t in range(2):
        k("v_mov_b32 v4, v5")
        for ks in range(28):
            if ks % 4 == 0 and ks:
                k("v_add_u32 v4, 4096, v4")
            k(f"buffer_load_dwordx4 a[{112*t+4*ks}:{112*t+4*ks+3}], v4, s[44:47], s{17+t} offen offset:{(ks%4)*1024}")
    lvo, lset = k.lab("vo"), k.lab("set")
    kin = 1 if is_b else 0
    k(f"""
    s_lshl_b32 s26, s31, 1
    s_add_u32 s26, s26, {kin}
    s_mul_i32 s27, s26, {L.STSZ}
    s_add_u32 s27, s27, {L.ST}
    s_mul_i32 s26, s26, {L.XFSZ}
    s_add_u32 s26, s26, {L.XF}
    s_cmp_ge_u32 s16, {nqk}
    s_cbranch_scc1 {lvo}
    s_mul_i32 s22, s31, {L.QKBSZ if is_b else L.QKASZ}
    s_add_u32 s22, s22, {L.QKB if is_b else L.QKA}
    s_lshl_b32 s19, s16, 11
    s_add_u32 s22, s22, s19
    s_mov_b32 s23, {524288 if is_b else 65536}
    s_mov_b32 s24, 0
    s_branch {lset}
    """)
    k.label(lvo)
    k(f"""
    s_mul_i32 s22, s31, {L.VOXSZ if is_b else L.VASZ}
    s_add_u32 s22, s22, {L.VOX if is_b else L.VA}
    s_sub_u32 s19, s16, {nqk}
    s_lshl_b32 s19, s19, 11
    s_add_u32 s22, s22, s19
    s_mov_b32 s23, {458752 if is_b else 32768}
    s_mov_b32 s24, 1
    """)
    k.label(lset)
    lloop, lf1, le, lnw = k.lab("gl"), k.lab("f1"), k.lab("ge"), k.lab("nw")
    k("s_mov_b32 s20, 0\ns_waitcnt vmcnt(0)")
    k.label(lloop)
    tstamp(k, 0)
    if is_b:
        wait_flags(k, L.F_D3B, NG3)
    else:
        k(f"s_cmp_eq_u32 s31, 0\ns_cbranch_scc1 {lnw}")
        wait_flags(k, L.F_XR, 4)
        k.label(lnw)
    tstamp(k, 1)
    load_xn(k)
    tstamp(k, 2)
    k(f"s_cmp_lg_u32 s24, 0\ns_cbranch_scc1 {lf1}")
    for form in (0, 1):
        if form == 1: k.label(lf1)
        PF = 4
        for ks in range(PF):
            k(f"ds_read_b128 v[{64+4*ks}:{67+4*ks}], v5 offset:{ks*1024}")
        for ks in range(28):
            rem = min(PF - 1, 27 - ks)
            k(f"s_waitcnt lgkmcnt({rem})")
            B = 64 + 4 * (ks % (PF + 1))
            for t in range(2):
                c = "0" if ks == 0 else f"v[{16+16*t}:{31+16*t}]"
                W = f"a[{112*t+4*ks}:{112*t+4*ks+3}]"
                X = f"v[{B}:{B+3}]"
                if form == 0:
                    k(f"v_mfma_f32_32x32x16_bf16 v[{16+16*t}:{31+16*t}], {W}, {X}, {c}")
                else:
                    k(f"v_mfma_f32_32x32x16_bf16 v[{16+16*t}:{31+16*t}], {X}, {W}, {c}")
                if t == 0 and ks + PF < 28:
                    Bn = 64 + 4 * ((ks + PF) % (PF + 1))
                    k(f"ds_read_b128 v[{Bn}:{Bn+3}], v5 offset:{(ks+PF)*1024}")
        if form == 0: k(f"s_branch {le}")
    k.label(le)
    k("s_nop 15\ns_nop 1")
    for t in range(2):
        for i in range(8):
            k(f"v_cvt_pk_bf16_f32 v{96+8*t+i}, v{16+16*t+2*i}, v{17+16*t+2*i}")
        k(f"""
        buffer_store_dwordx4 v[{96+8*t}:{99+8*t}], v5, s[44:47], s22 offen offset:{t*2048}{SC}
        buffer_store_dwordx4 v[{100+8*t}:{103+8*t}], v5, s[44:47], s22 offen offset:{t*2048+1024}{SC}
        """)
    k("s_add_u32 s22, s22, s23")
    set_flag(k, L.F_D4 if is_b else L.F_D2, 15)
    tdump(k)
    k(f"""
    s_add_u32 s20, s20, 1
    s_cmp_lt_u32 s20, 64
    s_cbranch_scc1 {lloop}
    s_branch {done}
    """)

def res_prefetch(k, R):
    k(f"""
    s_mul_i32 s6, s20, 28672
    s_add_u32 s6, s6, s26
    s_lshl_b32 s7, s16, 11
    s_add_u32 s6, s6, s7
    """)
    for q in range(4):
        k(f"buffer_load_dwordx2 v[{R+2*q}:{R+2*q+1}], v60, s[44:47], s6 offen offset:{q*512}{SC}")

def res_epilogue(k, A, R, T, final):
    k(f"v_mov_b32 v{T+2}, 0\nv_mov_b32 v{T+3}, 0")
    for p in range(8):
        k(f"""
        v_cvt_pk_bf16_f32 v{T+1}, v{A+2*p}, v{A+2*p+1}
        v_lshlrev_b32 v{T+4}, 16, v{R+p}
        v_and_b32 v{T+5}, 0xffff0000, v{R+p}
        v_lshlrev_b32 v{A+2*p}, 16, v{T+1}
        v_and_b32 v{A+2*p+1}, 0xffff0000, v{T+1}
        v_add_f32 v{A+2*p}, v{A+2*p}, v{T+4}
        v_add_f32 v{A+2*p+1}, v{A+2*p+1}, v{T+5}
        v_cvt_pk_bf16_f32 v{R+p}, v{A+2*p}, v{A+2*p+1}
        """)
        if not final:
            k(f"""
            v_lshlrev_b32 v{A+2*p}, 16, v{R+p}
            v_and_b32 v{A+2*p+1}, 0xffff0000, v{R+p}
            v_add_f32 v{T+2}, v{T+2}, v{A+2*p}
            v_add_f32 v{T+2}, v{T+2}, v{A+2*p+1}
            v_fmac_f32 v{T+3}, v{A+2*p}, v{A+2*p}
            v_fmac_f32 v{T+3}, v{A+2*p+1}, v{A+2*p+1}
            """)
    if final:
        k(f"""
        s_mul_i32 s6, s20, 28672
        s_lshl_b32 s7, s16, 6
        s_add_u32 s6, s6, s7
        v_mul_u32_u24 v{T}, 896, v2
        v_lshl_add_u32 v{T}, v3, 3, v{T}
        """)
        for q in range(4):
            k(f"buffer_store_dwordx2 v[{R+2*q}:{R+2*q+1}], v{T}, s[52:55], s6 offen offset:{q*16}")
        return
    k(f"""
    s_mul_i32 s6, s20, 28672
    s_add_u32 s6, s6, s28
    s_lshl_b32 s7, s16, 11
    s_add_u32 s6, s6, s7
    """)
    for q in range(4):
        k(f"buffer_store_dwordx2 v[{R+2*q}:{R+2*q+1}], v60, s[44:47], s6 offen offset:{q*512}{SC}")
    k(f"""
    v_mov_b32 v{T+4}, v{T+2}
    v_mov_b32 v{T+5}, v{T+3}
    s_nop 1
    v_permlane32_swap_b32 v{T+2}, v{T+4}
    v_permlane32_swap_b32 v{T+3}, v{T+5}
    s_nop 1
    v_add_f32 v{T+2}, v{T+2}, v{T+4}
    v_add_f32 v{T+3}, v{T+3}, v{T+5}
    s_mul_i32 s6, s20, 3584
    s_add_u32 s6, s6, s29
    s_lshl_b32 s7, s16, 8
    s_add_u32 s6, s6, s7
    buffer_store_dwordx2 v[{T+2}:{T+3}], v59, s[44:47], s6 offen{SC}
    """)

def res_setup(k, kin):
    k(f"""
    s_lshl_b32 s16, s15, 2
    s_add_u32 s16, s16, s3             ; ct
    s_lshl_b32 s26, s31, 1
    s_add_u32 s26, s26, {kin}
    s_add_u32 s28, s26, 1
    s_mul_i32 s29, s28, {L.STSZ}
    s_add_u32 s29, s29, {L.ST}
    s_mul_i32 s28, s28, {L.XFSZ}
    s_add_u32 s28, s28, {L.XF}
    s_mul_i32 s26, s26, {L.XFSZ}
    s_add_u32 s26, s26, {L.XF}
    v_lshlrev_b32 v60, 4, v2
    v_lshl_add_u32 v60, v3, 3, v60
    v_lshlrev_b32 v59, 3, v2
    v_mov_b32 v8, {BIG}
    v_cmp_eq_u32 vcc, 0, v3
    s_nop 1
    v_cndmask_b32 v59, v8, v59, vcc
    s_min_u32 s17, s16, 13
    """)

def g3b_stage(k, done):
    res_setup(k, 0)
    k(f"s_lshl_b32 s7, s17, 15\ns_add_u32 s7, s7, {L.WOAF}\nv_mov_b32 v6, v5")
    for ks in range(32):
        if ks % 4 == 0 and ks:
            k("v_add_u32 v6, 4096, v6")
        k(f"buffer_load_dwordx4 a[{4*ks}:{4*ks+3}], v6, s[44:47], s7 offen offset:{(ks%4)*1024}")
    lloop, lsk = k.lab("gl"), k.lab("sk")
    k(f"""
    s_mul_i32 s22, s31, {L.VASZ}
    s_add_u32 s22, s22, {L.OA}
    s_lshl_b32 s7, s3, 13
    s_add_u32 s22, s22, s7
    s_mov_b32 s20, 0
    s_waitcnt vmcnt(0)
    """)
    k.label(lloop)
    tstamp(k, 0)
    wait_flags(k, L.F_D3, 4)
    tstamp(k, 1)
    k("v_add_u32 v4, 4096, v5")
    for j in range(8):
        k(f"buffer_load_dwordx4 v[{64+4*j}:{67+4*j}], v{5 if j < 4 else 4}, s[44:47], s22 offen offset:{(j%4)*1024}{SC}")
    k("s_mov_b32 s18, s16\ns_mov_b32 s16, s17")
    res_prefetch(k, 40)
    k("s_mov_b32 s16, s18\ns_add_u32 s22, s22, 32768\ns_lshl_b32 s7, s3, 13\nv_add_u32 v4, s7, v5\ns_waitcnt vmcnt(4)")
    for j in range(8):
        k(f"ds_write_b128 v4, v[{64+4*j}:{67+4*j}] offset:{j*1024}")
    k("s_waitcnt lgkmcnt(0)\ns_barrier")
    tstamp(k, 2)
    PF = 4
    for ks in range(PF):
        k(f"ds_read_b128 v[{64+4*ks}:{67+4*ks}], v5 offset:{ks*1024}")
    for ks in range(32):
        rem = min(PF - 1, 31 - ks)
        k(f"s_waitcnt lgkmcnt({rem})")
        B = 64 + 4 * (ks % (PF + 1))
        c = "0" if ks == 0 else "v[16:31]"
        k(f"v_mfma_f32_32x32x16_bf16 v[16:31], a[{4*ks}:{4*ks+3}], v[{B}:{B+3}], {c}")
        if ks + PF < 32:
            Bn = 64 + 4 * ((ks + PF) % (PF + 1))
            k(f"ds_read_b128 v[{Bn}:{Bn+3}], v5 offset:{(ks+PF)*1024}")
    k(f"s_nop 15\ns_nop 1\ns_waitcnt vmcnt(0)\ns_cmp_ge_u32 s16, 14\ns_cbranch_scc1 {lsk}")
    res_epilogue(k, 16, 40, 48, False)
    k.label(lsk)
    set_flag(k, L.F_D3B, 15)
    tdump(k)
    k(f"s_add_u32 s20, s20, 1\ns_cmp_lt_u32 s20, 64\ns_cbranch_scc1 {lloop}\ns_branch {done}")

def t3_stage(k, done):
    lloop = k.lab("tl")
    k(f"""
    s_lshr_b32 s20, s15, 2
    s_and_b32 s15, s15, 3
    s_lshl_b32 s16, s15, 2
    s_add_u32 s16, s16, s3             ; head
    s_lshl_b32 s7, s16, 11
    s_mul_i32 s22, s31, {L.QKASZ}
    s_add_u32 s22, s22, {L.QKA}
    s_add_u32 s22, s22, s7
    s_mul_i32 s23, s31, {L.VASZ}
    s_add_u32 s24, s23, {L.OA}
    s_add_u32 s24, s24, s7
    s_add_u32 s23, s23, {L.VA}
    s_add_u32 s23, s23, s7
    v_lshlrev_b32 v6, 2, v3
    v_sub_u32 v6, v2, v6
    v_mov_b32 v7, 0xff800000
    """)
    k.label(lloop)
    tstamp(k, 0)
    wait_flags(k, L.F_D2, NG2)
    tstamp(k, 1)
    k(f"""
    s_lshl_b32 s6, s20, 16
    s_add_u32 s6, s6, s22
    buffer_load_dwordx4 v[8:11], v5, s[44:47], s6 offen{SC}
    buffer_load_dwordx4 v[12:15], v5, s[44:47], s6 offen offset:1024{SC}
    s_add_u32 s8, s6, 32768
    s_lshl_b32 s9, s20, 15
    s_add_u32 s9, s9, s23
    """)
    for i in range(9):
        l = k.lab("sk")
        back = 8 - i
        k(f"""
        s_cmp_lt_u32 s20, {back}
        s_cbranch_scc1 {l}
        s_sub_u32 s10, s8, {back*65536}
        s_sub_u32 s11, s9, {back*32768}
        buffer_load_dwordx4 a[{8*i}:{8*i+3}], v5, s[44:47], s10 offen{SC}
        buffer_load_dwordx4 a[{8*i+4}:{8*i+7}], v5, s[44:47], s10 offen offset:1024{SC}
        buffer_load_dwordx4 a[{72+8*i}:{72+8*i+3}], v5, s[44:47], s11 offen{SC}
        buffer_load_dwordx4 a[{72+8*i+4}:{72+8*i+7}], v5, s[44:47], s11 offen offset:1024{SC}
        """)
        k.label(l)
    for r in range(16):
        k(f"v_mov_b32 v{16+r}, 0")
    k("s_waitcnt vmcnt(0)")
    tstamp(k, 2)
    for i in range(9):
        l, l2 = k.lab("s"), k.lab("s2")
        back = 8 - i
        S = 64 + 16 * i
        k(f"""
        s_cmp_lt_u32 s20, {back}
        s_cbranch_scc1 {l}
        v_mfma_f32_32x32x16_bf16 v[{S}:{S+15}], a[{8*i}:{8*i+3}], v[8:11], 0
        v_mfma_f32_32x32x16_bf16 v[{S}:{S+15}], a[{8*i+4}:{8*i+7}], v[12:15], v[{S}:{S+15}]
        s_branch {l2}
        """)
        k.label(l)
        for r in range(16):
            k(f"v_mov_b32 v{S+r}, v7")
        k.label(l2)
    k("s_nop 15\ns_nop 3")
    for r in range(16):
        c = 8 * (r >> 2) + (r & 3)
        k(f"""
        v_cmp_le_i32 vcc, {c}, v6
        s_nop 1
        v_cndmask_b32 v{64+128+r}, v7, v{64+128+r}, vcc
        v_cndmask_b32 v{64+r}, v{64+r}, v7, vcc
        """)
    for j in range(4):
        k(f"v_max_f32 v{32+j}, v{64+2*j}, v{65+2*j}")
    for r in range(8, 144, 2):
        j = (r >> 1) & 3
        k(f"v_max3_f32 v{32+j}, v{32+j}, v{64+r}, v{65+r}")
    c = 28 ** -0.5 * math.log2(math.e)
    k(f"""
    v_max_f32 v32, v32, v33
    v_max_f32 v34, v34, v35
    v_max_f32 v32, v32, v34
    v_mov_b32 v33, v32
    s_nop 1
    v_permlane32_swap_b32 v32, v33
    s_nop 1
    v_max_f32 v32, v32, v33
    s_mov_b32 s12, {f32hex(c)}
    v_mul_f32 v33, s12, v32
    v_mov_b32 v34, 0
    v_mov_b32 v35, 0
    v_mov_b32 v36, 0
    v_mov_b32 v37, 0
    """)
    for r in range(144):
        k(f"v_fma_f32 v{64+r}, v{64+r}, s12, -v33")
    for r in range(144):
        k(f"v_exp_f32 v{64+r}, v{64+r}")
    k("s_nop 0")
    for r in range(144):
        k(f"v_add_f32 v{34+(r&3)}, v{34+(r&3)}, v{64+r}")
    for r in range(72):
        k(f"v_cvt_pk_bf16_f32 v{64+r}, v{64+2*r}, v{65+2*r}")
    k("""
    v_add_f32 v34, v34, v35
    v_add_f32 v36, v36, v37
    v_add_f32 v34, v34, v36
    v_mov_b32 v35, v34
    s_nop 1
    v_permlane32_swap_b32 v34, v35
    s_nop 1
    v_add_f32 v34, v34, v35
    v_rcp_f32 v34, v34
    """)
    for i in range(9):
        l = k.lab("p")
        back = 8 - i
        P = 64 + 8 * i
        k(f"""
        s_cmp_lt_u32 s20, {back}
        s_cbranch_scc1 {l}
        v_mfma_f32_32x32x16_bf16 v[16:31], a[{72+8*i}:{72+8*i+3}], v[{P}:{P+3}], v[16:31]
        v_mfma_f32_32x32x16_bf16 v[16:31], a[{72+8*i+4}:{72+8*i+7}], v[{P+4}:{P+7}], v[16:31]
        """)
        k.label(l)
    k("s_nop 15\ns_nop 3")
    for r in range(16):
        k(f"v_mul_f32 v{16+r}, v{16+r}, v34")
    for i in range(8):
        k(f"v_cvt_pk_bf16_f32 v{40+i}, v{16+2*i}, v{17+2*i}")
    k(f"""
    s_lshl_b32 s9, s20, 15
    s_add_u32 s9, s9, s24
    buffer_store_dwordx4 v[40:43], v5, s[44:47], s9 offen{SC}
    buffer_store_dwordx4 v[44:47], v5, s[44:47], s9 offen offset:1024{SC}
    """)
    set_flag(k, L.F_D3, 15)
    tdump(k)
    k(f"s_add_u32 s20, s20, 2\ns_cmp_lt_u32 s20, 64\ns_cbranch_scc1 {lloop}\ns_branch {done}")

def s_stage(k, done):
    lloop = k.lab("sl")
    k(f"""
    s_lshr_b32 s20, s15, 2
    s_and_b32 s15, s15, 3
    s_lshl_b32 s16, s15, 2
    s_add_u32 s16, s16, s3             ; head
    s_mul_i32 s22, s31, {L.QKBSZ}
    s_add_u32 s22, s22, {L.QKB}
    s_lshl_b32 s7, s16, 14
    s_add_u32 s22, s22, s7
    s_mul_i32 s23, s31, {L.KMSZ}
    s_add_u32 s23, s23, {L.KM}
    s_lshl_b32 s7, s16, 12
    s_add_u32 s23, s23, s7
    s_mul_i32 s24, s31, {L.PGSZ}
    s_add_u32 s24, s24, {L.PG}
    s_lshl_b32 s7, s16, 11
    s_add_u32 s25, s24, s7             ; x part
    s_lshr_b32 s7, s16, 1
    s_lshl_b32 s7, s7, 10
    s_add_u32 s24, s24, s7
    s_and_b32 s7, s16, 1
    s_lshl_b32 s7, s7, 3
    s_add_u32 s24, s24, s7
    s_add_u32 s24, s24, 32768
    v_lshlrev_b32 v6, 7, v3
    v_lshl_add_u32 v6, v2, 4, v6
    v_mov_b32 v8, {BIG}
    v_cmp_gt_u32 vcc, 8, v2
    s_nop 1
    v_cndmask_b32 v6, v8, v6, vcc
    v_lshlrev_b32 v7, 2, v3
    v_sub_u32 v7, v2, v7
    s_mov_b32 s19, {f32hex(math.log2(math.e)/16)}
    """)
    k.label(lloop)
    tstamp(k, 0)
    wait_flags(k, L.F_D4, NG4)
    k(f"""
    s_lshl_b32 s9, s20, 19
    s_add_u32 s9, s9, s22
    s_add_u32 s10, s9, 262144
    v_mov_b32 v4, v5
    """)
    for kk in range(16):
        if kk % 4 == 0 and kk:
            k("v_add_u32 v4, 4096, v4")
        k(f"""
        buffer_load_dwordx4 a[{4*kk}:{4*kk+3}], v4, s[44:47], s9 offen offset:{(kk%4)*1024}{SC}
        buffer_load_dwordx4 a[{64+4*kk}:{64+4*kk+3}], v4, s[44:47], s10 offen offset:{(kk%4)*1024}{SC}
        """)
    k("s_waitcnt vmcnt(0)")
    for kk in range(16):
        c0 = "0" if kk == 0 else "v[16:31]"
        k(f"v_mfma_f32_32x32x16_bf16 v[16:31], a[{64+4*kk}:{64+4*kk+3}], a[{4*kk}:{4*kk+3}], {c0}")
    wait_flags(k, L.F_C, 32)
    tstamp(k, 1)
    k("s_lshl_b32 s11, s20, 16\ns_add_u32 s11, s11, s23")
    for kk in range(16):
        k(f"buffer_load_dwordx4 v[{64+4*kk}:{64+4*kk+3}], v6, s[44:47], s11 offen offset:{kk*256}{SC}")
    k("v_mov_b32 v8, 0xff800000")
    for r in range(16):
        c = 8 * (r >> 2) + (r & 3)
        k(f"v_cmp_le_i32 vcc, {c}, v7\ns_nop 1\nv_cndmask_b32 v{16+r}, v8, v{16+r}, vcc")
    k("v_max_f32 v10, v16, v17")
    for r in range(2, 16, 2):
        k(f"v_max3_f32 v10, v10, v{16+r}, v{17+r}")
    k("s_waitcnt vmcnt(0)")
    tstamp(k, 2)
    for kk in range(16):
        c1 = "0" if kk == 0 else "v[32:47]"
        k(f"v_mfma_f32_32x32x16_bf16 v[32:47], v[{64+4*kk}:{64+4*kk+3}], a[{4*kk}:{4*kk+3}], {c1}")
    k("""
    s_nop 15
    s_nop 3
    v_max3_f32 v10, v10, v32, v33
    v_max3_f32 v10, v10, v34, v35
    v_mov_b32 v11, v10
    s_nop 1
    v_permlane32_swap_b32 v10, v11
    s_nop 1
    v_max_f32 v10, v10, v11
    v_mul_f32 v10, s19, v10
    """)
    for r in range(20):
        k(f"v_fma_f32 v{16+r}, v{16+r}, s19, -v10")
    for r in range(20):
        k(f"v_exp_f32 v{16+r}, v{16+r}")
    k("s_nop 0\nv_add_f32 v10, v16, v17\nv_add_f32 v11, v18, v19")
    for r in range(4, 20, 2):
        k(f"v_add_f32 v10, v10, v{16+r}\nv_add_f32 v11, v11, v{17+r}")
    k("""
    v_add_f32 v10, v10, v11
    v_mov_b32 v11, v10
    s_nop 1
    v_permlane32_swap_b32 v10, v11
    s_nop 1
    v_add_f32 v10, v10, v11
    v_rcp_f32 v10, v10
    s_nop 0
    """)
    for r in range(20):
        k(f"v_mul_f32 v{16+r}, v{16+r}, v10")
    for j in range(10):
        k(f"v_cvt_pk_bf16_f32 v{48+j}, v{16+2*j}, v{17+2*j}")
    k(f"""
    s_mul_i32 s9, s20, 40960
    s_add_u32 s10, s9, s24
    s_add_u32 s9, s9, s25
    buffer_store_dwordx4 v[48:51], v5, s[44:47], s9 offen{SC}
    buffer_store_dwordx4 v[52:55], v5, s[44:47], s9 offen offset:1024{SC}
    buffer_store_dwordx2 v[56:57], v5, s[44:47], s10 offen{SC}
    """)
    set_flag(k, L.F_DS, 15)
    tdump(k)
    k(f"s_add_u32 s20, s20, 2\ns_cmp_lt_u32 s20, 64\ns_cbranch_scc1 {lloop}\ns_branch {done}")

def z_stage(k, done):
    lloop, lsk, lfin, lsf = k.lab("zl"), k.lab("sk"), k.lab("fin"), k.lab("sf")
    k("s_lshr_b32 s20, s15, 2\ns_and_b32 s15, s15, 3")
    res_setup(k, 1)
    k(f"""
    s_mul_i32 s22, s31, {L.VOXSZ}
    s_add_u32 s22, s22, {L.VOX}
    s_lshl_b32 s7, s17, 11
    s_add_u32 s22, s22, s7
    s_mul_i32 s23, s31, {L.UMSZ}
    s_add_u32 s23, s23, {L.UM}
    s_lshl_b32 s7, s17, 10
    s_add_u32 s23, s23, s7
    s_mul_i32 s24, s31, {L.PGSZ}
    s_add_u32 s24, s24, {L.PG}
    s_mul_i32 s7, s3, 10240
    s_add_u32 s24, s24, s7
    """)
    k.label(lloop)
    tstamp(k, 0)
    wait_flags(k, L.F_D4, NG4)
    k("s_mul_i32 s8, s20, 458752\ns_add_u32 s8, s8, s22")
    for ksx in range(32):
        h, ksp = ksx >> 1, ksx & 1
        k(f"s_add_u32 s10, s8, {h*28672}\nbuffer_load_dwordx4 a[{4*ksx}:{4*ksx+3}], v5, s[44:47], s10 offen offset:{ksp*1024}{SC}")
    k("s_mov_b32 s18, s16\ns_mov_b32 s16, s17")
    res_prefetch(k, 40)
    k("s_mov_b32 s16, s18")
    wait_flags(k, L.F_DS, 4)
    tstamp(k, 1)
    k(f"""
    s_mul_i32 s9, s20, 40960
    s_add_u32 s9, s9, s24
    v_add_u32 v4, 4096, v5
    v_add_u32 v6, 8192, v5
    """)
    for j in range(10):
        k(f"buffer_load_dwordx4 v[{64+4*j}:{67+4*j}], v{(5,4,6)[j//4]}, s[44:47], s9 offen offset:{(j%4)*1024}{SC}")
    k("s_mul_i32 s9, s20, 114688\ns_add_u32 s9, s9, s23")
    for u in range(8):
        k(f"s_add_u32 s10, s9, {u*14336}\nbuffer_load_dwordx4 a[{128+4*u}:{131+4*u}], v5, s[44:47], s10 offen{SC}")
    k("s_mul_i32 s7, s3, 10240\nv_add_u32 v4, s7, v5\ns_waitcnt vmcnt(8)")
    for j in range(10):
        k(f"ds_write_b128 v4, v[{64+4*j}:{67+4*j}] offset:{j*1024}")
    k("s_waitcnt lgkmcnt(0)\ns_barrier\ns_waitcnt vmcnt(0)")
    tstamp(k, 2)
    PF = 4
    for ks in range(PF):
        k(f"ds_read_b128 v[{64+4*ks}:{67+4*ks}], v5 offset:{ks*1024}")
    for ks in range(40):
        rem = min(PF - 1, 39 - ks)
        k(f"s_waitcnt lgkmcnt({rem})")
        B = 64 + 4 * (ks % (PF + 1))
        c = "0" if ks == 0 else "v[16:31]"
        k(f"v_mfma_f32_32x32x16_bf16 v[16:31], a[{4*ks}:{4*ks+3}], v[{B}:{B+3}], {c}")
        if ks + PF < 40:
            Bn = 64 + 4 * ((ks + PF) % (PF + 1))
            k(f"ds_read_b128 v[{Bn}:{Bn+3}], v5 offset:{(ks+PF)*1024}")
    k(f"s_nop 15\ns_nop 1\ns_cmp_ge_u32 s16, 14\ns_cbranch_scc1 {lsk}\ns_cmp_lg_u32 s31, 0\ns_cbranch_scc1 {lfin}")
    res_epilogue(k, 16, 40, 48, False)
    k(f"s_branch {lsk}")
    k.label(lfin)
    res_epilogue(k, 16, 40, 48, True)
    k.label(lsk)
    k(f"s_cmp_lg_u32 s31, 0\ns_cbranch_scc1 {lsf}")
    set_flag(k, L.F_XR, 15, dl=1)
    k(f"s_branch {lsf}_e")
    k.label(lsf)
    k("s_barrier")
    k.label(lsf + "_e")
    tdump(k)
    k(f"s_add_u32 s20, s20, 2\ns_cmp_lt_u32 s20, 64\ns_cbranch_scc1 {lloop}\ns_branch {done}")

def worker(k, done):
    l1 = k.lab("w1")
    k(f"""
    v_and_b32 v2, 31, v62
    v_lshrrev_b32 v3, 5, v62
    v_lshlrev_b32 v5, 4, v62
    s_barrier
    s_cmp_lg_u32 s3, 0
    s_cbranch_scc1 {l1}
    s_mov_b64 s[34:35], exec
    s_mov_b64 exec, 1
    v_mov_b32 v8, 1
    v_mov_b32 v9, 128
    buffer_atomic_add v8, v9, s[48:51], 0 offen sc0
    v_mov_b32 v9, {LDS_ROLE}
    s_waitcnt vmcnt(0)
    ds_write_b32 v9, v8
    s_waitcnt lgkmcnt(0)
    s_mov_b64 exec, s[34:35]
    """)
    k.label(l1)
    lg2, lt3, lg3, ls, lz = [k.lab(x) for x in ("g2", "t3", "g3", "s", "z")]
    k(f"""
    s_barrier
    v_mov_b32 v9, {LDS_ROLE}
    ds_read_b32 v8, v9
    s_waitcnt lgkmcnt(0)
    v_readfirstlane_b32 s6, v8
    s_nop 3
    s_mov_b32 s94, s6
    s_cmp_ge_u32 s6, {2*PER}
    s_cbranch_scc1 {done}
    s_cmp_ge_u32 s6, {PER}
    s_cselect_b32 s31, 1, 0
    s_mul_i32 s7, s31, {PER}
    s_sub_u32 s15, s6, s7
    s_cmp_ge_u32 s15, {NG4+NG2+NT3+NG3+NS}
    s_cbranch_scc1 {lz}
    s_cmp_ge_u32 s15, {NG4+NG2+NT3+NG3}
    s_cbranch_scc1 {ls}
    s_cmp_ge_u32 s15, {NG4+NG2+NT3}
    s_cbranch_scc1 {lg3}
    s_cmp_ge_u32 s15, {NG4+NG2}
    s_cbranch_scc1 {lt3}
    s_cmp_ge_u32 s15, {NG4}
    s_cbranch_scc1 {lg2}
    """)
    gemm_stage(k, done, True)
    k.label(lg2); k(f"s_sub_u32 s15, s15, {NG4}"); gemm_stage(k, done, False)
    k.label(lt3); k(f"s_sub_u32 s15, s15, {NG4+NG2}"); t3_stage(k, done)
    k.label(lg3); k(f"s_sub_u32 s15, s15, {NG4+NG2+NT3}"); g3b_stage(k, done)
    k.label(ls); k(f"s_sub_u32 s15, s15, {NG4+NG2+NT3+NG3}"); s_stage(k, done)
    k.label(lz); k(f"s_sub_u32 s15, s15, {NG4+NG2+NT3+NG3+NS}"); z_stage(k, done)
```

```python
from asm import *
import layout as L

BIG = 0x7FFFFF00

def wave_sum(k, v, tmp, addr):
    for m in (1, 2, 4, 8, 16, 32):
        k(f"""
        v_xor_b32 v{addr}, {4*m}, v63
        ds_bpermute_b32 v{tmp}, v{addr}, v{v}
        s_waitcnt lgkmcnt(0)
        v_add_f32 v{v}, v{v}, v{tmp}
        """)

def gen_prep():
    k = Kern("prep_kernel")
    NBOX = (L.BOXEND - L.MBOX) // 1024
    NWG = 4096 + NBOX // 4
    assert NBOX % 4 == 0
    k(f"s_cmp_ge_u32 s2, {NWG}")
    k("s_cbranch_scc1 prep_kernel_done")
    load_args(k)
    k("""
    v_lshrrev_b32 v1, 6, v0
    v_and_b32 v62, 63, v0          ; lane
    s_nop 0
    v_readfirstlane_b32 s3, v1
    v_lshlrev_b32 v63, 2, v62      ; lane*4
    v_and_b32 v2, 31, v62          ; m
    v_lshrrev_b32 v3, 5, v62       ; hi
    s_lshl_b32 s4, s2, 2
    s_add_u32 s4, s4, s3           ; unit
    s_waitcnt lgkmcnt(0)
    """)
    srd(k, 44, P_WS, L.WS_BYTES)
    k("""
    v_mov_b32 v8, 0
    v_mov_b32 v9, 0
    v_mov_b32 v10, 0
    v_mov_b32 v11, 0
    v_lshlrev_b32 v5, 4, v62
    """)
    la, lb, lc, ld_, le, lst = [k.lab(x) for x in "abcde"] + [k.lab("st")]
    k(f"""
    s_cmp_lt_u32 s4, 8192
    s_cbranch_scc1 {la}
    s_cmp_lt_u32 s4, 12288
    s_cbranch_scc1 {lb}
    s_cmp_lt_u32 s4, 13824
    s_cbranch_scc1 {lc}
    s_cmp_lt_u32 s4, 14336
    s_cbranch_scc1 {ld_}
    s_cmp_lt_u32 s4, 16384
    s_cbranch_scc1 {le}
    """)
    lz = k.lab("z")
    k(f"""
    s_sub_u32 s4, s4, 16384
    s_lshl_b32 s9, s4, 10
    s_add_u32 s9, s9, {L.MBOX}
    s_and_b32 s5, s4, 511
    s_cmp_ge_u32 s4, 1024
    s_cbranch_scc1 {lz}
    s_cmp_ge_u32 s5, 7
    s_cbranch_scc1 {lz}
    """)
    srd(k, 48, P_MEM0, 7168)
    k(f"""
    s_lshl_b32 s5, s5, 10
    buffer_load_dwordx4 v[8:11], v5, s[48:51], s5 offen
    v_mov_b32 v12, 0x80008000
    s_waitcnt vmcnt(0)
    """)
    for i in range(4):
        k(f"""
        v_xor_b32 v{8+i}, v12, v{8+i}
        v_cmp_eq_u32 vcc, 0, v{8+i}
        s_nop 1
        v_cndmask_b32 v{8+i}, v{8+i}, v12, vcc
        """)
    k.label(lz)
    k("""
    buffer_store_dwordx4 v[8:11], v5, s[44:47], s9 offen
    s_branch prep_kernel_done
    """)
    def loads(joffs):
        for j in range(8):
            k(f"s_mov_b32 s{60+j}, {joffs[j]}")
        for j in range(8):
            k(f"buffer_load_ushort v{40 + j}, v{6 if (j>=4 and loads.alt) else 4}, s[48:51], s{60+j} offen")
    loads.alt = False
    k.label(la)
    k("""
    s_lshr_b32 s5, s4, 5           ; tile 0..255
    s_and_b32 s6, s4, 31           ; ks
    s_cmp_ge_u32 s6, 28
    s_cbranch_scc1 prep_kernel_done
    s_cmp_lt_u32 s5, 128
    s_cselect_b32 s48, s26, s28
    s_cselect_b32 s49, s27, s29
    s_mov_b32 s50, 3670016
    s_mov_b32 s51, 0x00020000
    s_and_b32 s7, s5, 127
    s_lshl_b32 s7, s7, 6
    s_lshl_b32 s8, s6, 17          ; ks*16*8192
    s_add_u32 s7, s7, s8
    v_lshlrev_b32 v4, 16, v3       ; hi*8*8192
    v_lshl_add_u32 v4, v2, 1, v4
    v_add_u32 v4, s7, v4
    s_mul_i32 s9, s5, 28672
    s_lshl_b32 s10, s6, 10
    s_add_u32 s9, s9, s10
    """)
    k(f"s_add_u32 s9, s9, {L.WTF}")
    loads([j * 8192 for j in range(8)])
    k(f"s_branch {lst}")
    k.label(lb)
    k("""
    s_sub_u32 s4, s4, 8192
    s_lshr_b32 s5, s4, 8           ; h
    s_lshr_b32 s6, s4, 4
    s_and_b32 s6, s6, 15           ; ct
    s_and_b32 s7, s4, 15           ; ks
    s_cmp_ge_u32 s6, 14
    s_cbranch_scc1 prep_kernel_done
    """)
    srd(k, 48, P_WO_B, 3670016)
    k("""
    s_lshl_b32 s8, s5, 8
    s_lshl_b32 s9, s7, 4
    s_add_u32 s8, s8, s9           ; h*256+16ks
    s_mul_i32 s8, s8, 896
    s_lshl_b32 s9, s6, 6
    s_add_u32 s8, s8, s9           ; + ct*64
    v_mul_u32_u24 v4, 7168, v3     ; hi*8*896
    v_lshl_add_u32 v4, v2, 1, v4
    v_add_u32 v4, s8, v4
    s_mul_i32 s9, s5, 14
    s_add_u32 s9, s9, s6
    s_lshl_b32 s9, s9, 4
    s_add_u32 s9, s9, s7
    s_lshl_b32 s9, s9, 10
    """)
    k(f"s_add_u32 s9, s9, {L.WOF}")
    loads([j * 896 for j in range(8)])
    k(f"s_branch {lst}")
    k.label(lc)
    k("""
    s_sub_u32 s4, s4, 12288
    s_lshr_b32 s5, s4, 5           ; tile
    s_and_b32 s6, s4, 31           ; ks
    s_cmp_ge_u32 s6, 28
    s_cbranch_scc1 prep_kernel_done
    """)
    srd(k, 48, P_WQKV, 448 * 1344 * 2)
    k(f"""
    s_mul_i32 s7, s5, 56
    s_mul_i32 s8, s6, 43008        ; 16*2688
    s_add_u32 s7, s7, s8
    v_mul_u32_u24 v4, 21504, v3    ; hi*8*2688
    v_lshl_add_u32 v4, v2, 1, v4
    v_add_u32 v4, s7, v4
    v_mov_b32 v6, {BIG}
    v_cmp_gt_u32 vcc, 28, v2
    s_nop 1
    v_cndmask_b32 v4, v6, v4, vcc
    s_mul_i32 s9, s5, 28672
    s_lshl_b32 s10, s6, 10
    s_add_u32 s9, s9, s10
    s_add_u32 s9, s9, {L.WAF}
    """)
    loads([j * 2688 for j in range(8)])
    k(f"s_branch {lst}")
    k.label(ld_)
    k("""
    s_sub_u32 s4, s4, 13824
    s_lshr_b32 s5, s4, 5           ; ct
    s_and_b32 s6, s4, 31           ; ks
    s_cmp_ge_u32 s5, 14
    s_cbranch_scc1 prep_kernel_done
    """)
    srd(k, 48, P_WO_A, 448 * 448 * 2)
    k(f"""
    s_lshr_b32 s7, s6, 1           ; h
    s_and_b32 s8, s6, 1            ; ks'
    s_mul_i32 s7, s7, 28
    s_lshl_b32 s10, s8, 4
    s_add_u32 s7, s7, s10          ; h*28+16ks'
    s_mul_i32 s7, s7, 896
    s_lshl_b32 s10, s5, 6
    s_add_u32 s7, s7, s10
    v_mul_u32_u24 v4, 3584, v3     ; hi*4*896
    v_lshl_add_u32 v4, v2, 1, v4
    v_add_u32 v4, s7, v4
    v_mov_b32 v7, {BIG}
    v_mov_b32 v6, s8
    v_and_b32 v6, v6, v3
    v_cmp_eq_u32 vcc, 0, v6
    s_nop 1
    v_cndmask_b32 v6, v7, v4, vcc
    s_lshl_b32 s9, s5, 5
    s_add_u32 s9, s9, s6
    s_lshl_b32 s9, s9, 10
    s_add_u32 s9, s9, {L.WOAF}
    """)
    loads.alt = True
    loads([(j & 3) * 896 + (j >> 2) * 7168 for j in range(8)])
    loads.alt = False
    k.label(lst)
    k("""
    s_waitcnt vmcnt(0)
    v_lshl_or_b32 v8, v41, 16, v40
    v_lshl_or_b32 v9, v43, 16, v42
    v_lshl_or_b32 v10, v45, 16, v44
    v_lshl_or_b32 v11, v47, 16, v46
    buffer_store_dwordx4 v[8:11], v5, s[44:47], s9 offen
    s_branch prep_kernel_done
    """)
    k.label(le)
    k("s_sub_u32 s4, s4, 14336        ; row")
    srd(k, 48, P_AX, 2048 * 448 * 2)
    k(f"""
    s_mul_i32 s5, s4, 896
    v_mov_b32 v6, {BIG}
    v_cmp_gt_u32 vcc, 56, v62
    s_nop 1
    v_cndmask_b32 v4, v6, v5, vcc
    buffer_load_dwordx4 v[8:11], v4, s[48:51], s5 offen
    s_waitcnt vmcnt(0)
    """)
    for i in range(4):
        k(f"""
        v_lshlrev_b32 v{16+2*i}, 16, v{8+i}
        v_and_b32 v{17+2*i}, 0xffff0000, v{8+i}
        """)
    k("v_add_f32 v30, v16, v17")
    for i in range(2, 8):
        k(f"v_add_f32 v30, v30, v{16+i}")
    k("v_mul_f32 v31, v16, v16")
    for i in range(1, 8):
        k(f"v_fmac_f32 v31, v{16+i}, v{16+i}")
    wave_sum(k, 30, 33, 32)
    wave_sum(k, 31, 33, 32)
    k(f"""
    s_lshr_b32 s6, s4, 5
    s_mul_i32 s8, s6, 3584
    s_mul_i32 s6, s6, 28672
    s_and_b32 s7, s4, 31
    s_lshl_b32 s9, s7, 3
    s_add_u32 s8, s8, s9
    s_add_u32 s8, s8, {L.ST}
    s_lshl_b32 s7, s7, 4
    s_add_u32 s6, s6, s7
    s_add_u32 s6, s6, {L.XF}
    v_lshrrev_b32 v12, 1, v62
    v_lshlrev_b32 v12, 10, v12
    v_and_b32 v13, 1, v62
    v_lshl_add_u32 v12, v13, 9, v12
    v_cndmask_b32 v12, v6, v12, vcc
    buffer_store_dwordx4 v[8:11], v12, s[44:47], s6 offen
    v_cmp_eq_u32 vcc, 0, v62
    s_nop 1
    v_cndmask_b32 v30, 0, v30, vcc
    v_cndmask_b32 v31, 0, v31, vcc
    v_lshlrev_b32 v12, 8, v62
    v_cmp_gt_u32 vcc, 14, v62
    s_nop 1
    v_cndmask_b32 v12, v6, v12, vcc
    buffer_store_dwordx2 v[30:31], v12, s[44:47], s8 offen
    """)
    k.label("prep_kernel_done")
    return k, (NWG, 256, 0), dict(vgpr=64)

def gen_vo():
    k = Kern("vo_kernel")
    NWG = 1024
    k(f"s_cmp_ge_u32 s2, {NWG}")
    k("s_cbranch_scc1 vo_kernel_done")
    load_args(k)
    k("""
    v_lshrrev_b32 v1, 6, v0
    v_and_b32 v62, 63, v0
    s_nop 0
    v_readfirstlane_b32 s3, v1
    v_and_b32 v2, 31, v62          ; m
    v_lshrrev_b32 v3, 5, v62       ; hi
    s_lshl_b32 s4, s2, 2
    s_add_u32 s4, s4, s3
    s_lshr_b32 s5, s4, 8           ; h
    s_lshr_b32 s6, s4, 4
    s_and_b32 s6, s6, 15           ; dt
    s_and_b32 s7, s4, 15           ; ct
    s_cmp_ge_u32 s6, 14
    s_cbranch_scc1 vo_kernel_done
    s_cmp_ge_u32 s7, 14
    s_cbranch_scc1 vo_kernel_done
    s_waitcnt lgkmcnt(0)
    """)
    srd(k, 44, P_WS, L.WS_BYTES)
    srd(k, 48, P_WV, 3670016)
    k(f"""
    s_lshl_b32 s8, s6, 18
    s_lshl_b32 s9, s5, 9
    s_add_u32 s8, s8, s9
    v_lshlrev_b32 v4, 13, v2
    v_lshl_add_u32 v4, v3, 4, v4
    s_mul_i32 s9, s5, 14
    s_add_u32 s9, s9, s7
    s_lshl_b32 s9, s9, 14
    s_add_u32 s9, s9, {L.WOF}
    v_lshlrev_b32 v5, 4, v62
    """)
    for ks in range(16):
        k(f"buffer_load_dwordx4 v[{64+4*ks}:{67+4*ks}], v4, s[48:51], s8 offen offset:{ks*32}")
    for ks in range(16):
        if ks % 4 == 0 and ks:
            k("v_add_u32 v5, 4096, v5")
        k(f"buffer_load_dwordx4 v[{128+4*ks}:{131+4*ks}], v5, s[44:47], s9 offen offset:{(ks%4)*1024}")
    for r in range(16):
        k(f"v_mov_b32 v{16+r}, 0")
    k("s_waitcnt vmcnt(0)")
    for ks in range(16):
        k(f"v_mfma_f32_32x32x16_bf16 v[16:31], v[{64+4*ks}:{67+4*ks}], v[{128+4*ks}:{131+4*ks}], v[16:31]")
    k("s_nop 15\ns_nop 3")
    for q in range(4):
        k(f"""
        v_cvt_pk_bf16_f32 v{32+2*q}, v{16+4*q}, v{17+4*q}
        v_cvt_pk_bf16_f32 v{33+2*q}, v{18+4*q}, v{19+4*q}
        """)
    k(f"""
    s_mul_i32 s10, s5, 14
    s_add_u32 s10, s10, s7
    s_add_u32 s10, s10, 256
    s_mul_i32 s10, s10, 28672
    s_lshl_b32 s11, s6, 11
    s_add_u32 s10, s10, s11
    s_add_u32 s10, s10, {L.WTF}
    v_lshlrev_b32 v6, 4, v2
    v_lshl_add_u32 v6, v3, 3, v6
    """)
    for q in range(4):
        k(f"buffer_store_dwordx2 v[{32+2*q}:{33+2*q}], v6, s[44:47], s10 offen offset:{(q>>1)*1024+(q&1)*512}")
    k.label("vo_kernel_done")
    return k, (NWG, 256, 0), dict(vgpr=192)
```

```python
from asm import *
import layout as L
from k_a import f32hex
import math
BIG = 0x7FFFFF00
SC = " sc1"

def epi(k, ntiles_max, accbase, ct_s, nwaves, src_srd, src_off, dst_srd, dst_off, write_xn, T, sc=SC, dst_sc=SC):
    SUM, SQ = T + 2, T + 3
    k(f"""
    v_mul_u32_u24 v{T}, 896, v2
    v_lshl_add_u32 v{T}, v3, 3, v{T}
    v_mov_b32 v{SUM}, 0
    v_mov_b32 v{SQ}, 0
    """)
    R = T + 8
    for i in range(ntiles_max):
        l = k.lab("r")
        k(f"""
        s_cmp_ge_u32 s{ct_s+i}, 14
        s_cbranch_scc1 {l}
        s_lshl_b32 s13, s{ct_s+i}, 6
        s_add_u32 s13, s13, s{src_off}
        """)
        for q in range(4):
            k(f"buffer_load_dwordx2 v[{R+8*i+2*q}:{R+8*i+2*q+1}], v{T}, s[{src_srd}:{src_srd+3}], s13 offen offset:{q*16}{sc}")
        k.label(l)
    k("s_waitcnt vmcnt(0)")
    for i in range(ntiles_max):
        l = k.lab("r")
        k(f"s_cmp_ge_u32 s{ct_s+i}, 14\ns_cbranch_scc1 {l}")
        A = accbase + 16 * i
        for p in range(8):
            k(f"""
            v_cvt_pk_bf16_f32 v{T+1}, v{A+2*p}, v{A+2*p+1}
            v_lshlrev_b32 v{T+4}, 16, v{R+8*i+p}
            v_and_b32 v{T+5}, 0xffff0000, v{R+8*i+p}
            v_lshlrev_b32 v{A+2*p}, 16, v{T+1}
            v_and_b32 v{A+2*p+1}, 0xffff0000, v{T+1}
            v_add_f32 v{A+2*p}, v{A+2*p}, v{T+4}
            v_add_f32 v{A+2*p+1}, v{A+2*p+1}, v{T+5}
            v_cvt_pk_bf16_f32 v{R+8*i+p}, v{A+2*p}, v{A+2*p+1}
            v_lshlrev_b32 v{A+2*p}, 16, v{R+8*i+p}
            v_and_b32 v{A+2*p+1}, 0xffff0000, v{R+8*i+p}
            v_add_f32 v{SUM}, v{SUM}, v{A+2*p}
            v_add_f32 v{SUM}, v{SUM}, v{A+2*p+1}
            v_fmac_f32 v{SQ}, v{A+2*p}, v{A+2*p}
            v_fmac_f32 v{SQ}, v{A+2*p+1}, v{A+2*p+1}
            """)
        k(f"s_lshl_b32 s13, s{ct_s+i}, 6\ns_add_u32 s13, s13, s{dst_off}")
        for q in range(4):
            k(f"buffer_store_dwordx2 v[{R+8*i+2*q}:{R+8*i+2*q+1}], v{T}, s[{dst_srd}:{dst_srd+3}], s13 offen offset:{q*16}{dst_sc}")
        k.label(l)
    if not write_xn:
        return
    k(f"""
    v_lshlrev_b32 v{T+1}, 3, v62
    s_lshl_b32 s13, s3, 9
    v_add_u32 v{T+1}, s13, v{T+1}
    ds_write_b64 v{T+1}, v[{SUM}:{SQ}]
    s_waitcnt lgkmcnt(0)
    s_barrier
    v_lshlrev_b32 v{T+1}, 3, v2
    v_mov_b32 v{SUM}, 0
    v_mov_b32 v{SQ}, 0
    """)
    for w in range(nwaves):
        k(f"""
        ds_read_b64 v[{T+4}:{T+5}], v{T+1} offset:{w*512}
        ds_read_b64 v[{T+6}:{T+7}], v{T+1} offset:{w*512+256}
        s_waitcnt lgkmcnt(0)
        v_add_f32 v{SUM}, v{SUM}, v{T+4}
        v_add_f32 v{SQ}, v{SQ}, v{T+5}
        v_add_f32 v{SUM}, v{SUM}, v{T+6}
        v_add_f32 v{SQ}, v{SQ}, v{T+7}
        """)
    k(f"""
    v_mul_f32 v{SUM}, 0x3b124925, v{SUM}
    v_mul_f32 v{SQ}, 0x3b124925, v{SQ}
    v_fma_f32 v{SQ}, -v{SUM}, v{SUM}, v{SQ}
    v_max_f32 v{SQ}, 0, v{SQ}
    v_add_f32 v{SQ}, 0x3727c5ac, v{SQ}
    v_rsq_f32 v{SQ}, v{SQ}
    s_mul_i32 s14, s4, 28672
    s_add_u32 s14, s14, {L.XN}
    v_mul_f32 v{SUM}, v{SUM}, v{SQ}
    v_lshlrev_b32 v{T+4}, 4, v2
    v_lshl_add_u32 v{T+4}, v3, 3, v{T+4}
    """)
    for i in range(ntiles_max):
        l = k.lab("r")
        k(f"s_cmp_ge_u32 s{ct_s+i}, 14\ns_cbranch_scc1 {l}")
        A = accbase + 16 * i
        for p in range(8):
            k(f"""
            v_fma_f32 v{A+2*p}, v{A+2*p}, v{SQ}, -v{SUM}
            v_fma_f32 v{A+2*p+1}, v{A+2*p+1}, v{SQ}, -v{SUM}
            v_cvt_pk_bf16_f32 v{A+p}, v{A+2*p}, v{A+2*p+1}
            """)
        k(f"s_lshl_b32 s13, s{ct_s+i}, 11\ns_add_u32 s13, s13, s14")
        for q in range(4):
            k(f"buffer_store_dwordx2 v[{A+2*q}:{A+2*q+1}], v{T+4}, s[44:47], s13 offen offset:{q*512}{sc}")
        k.label(l)

PL = 8192
def task_kb3(k, layer):
    k(f"""
    s_lshl_b32 s6, s4, 19
    s_add_u32 s6, s6, {L.QKB}
    s_lshl_b32 s7, s4, 16
    s_add_u32 s7, s7, {L.KM + layer * L.KMSZ}
    v_lshlrev_b32 v6, 7, v3
    v_lshl_add_u32 v6, v2, 4, v6
    v_mov_b32 v8, {BIG}
    v_cmp_gt_u32 vcc, 8, v2
    s_nop 1
    v_cndmask_b32 v6, v8, v6, vcc
    v_lshlrev_b32 v7, 2, v3
    v_sub_u32 v7, v2, v7
    s_mov_b32 s12, {f32hex(math.log2(math.e)/16)}
    v_add_u32 v9, {PL}, v5
    """)
    def reg(setn, which, kk):
        if setn == 0:
            b = 64 * which + 4 * kk
            return f"a[{b}:{b+3}]"
        b = 64 + 64 * which + 4 * kk
        return f"v[{b}:{b+3}]"
    def loads(hh):
        st = hh & 1
        k(f"""
        s_lshl_b32 s8, s3, 2
        s_add_u32 s8, s8, {hh}
        s_lshl_b32 s9, s8, 14
        s_add_u32 s9, s9, s6
        s_add_u32 s10, s9, 262144
        s_lshl_b32 s11, s8, 12
        s_add_u32 s11, s11, s7
        v_mov_b32 v4, v5
        """)
        for kk in range(16):
            if kk % 4 == 0 and kk:
                k("v_add_u32 v4, 4096, v4")
            k(f"""
            buffer_load_dwordx4 {reg(st,0,kk)}, v4, s[44:47], s9 offen offset:{(kk%4)*1024}{SC}
            buffer_load_dwordx4 {reg(st,1,kk)}, v4, s[44:47], s10 offen offset:{(kk%4)*1024}{SC}
            buffer_load_dwordx4 {reg(st,2,kk)}, v6, s[44:47], s11 offen offset:{kk*256}{SC}
            """)
    loads(0); loads(1)
    for hh in range(4):
        st = hh & 1
        k(f"s_waitcnt vmcnt({48 if hh < 3 else 0})")
        for kk in range(16):
            c0 = "0" if kk == 0 else "v[16:31]"
            c1 = "0" if kk == 0 else "v[32:47]"
            k(f"""
            v_mfma_f32_32x32x16_bf16 v[16:31], {reg(st,1,kk)}, {reg(st,0,kk)}, {c0}
            v_mfma_f32_32x32x16_bf16 v[32:47], {reg(st,2,kk)}, {reg(st,0,kk)}, {c1}
            """)
        if hh + 2 < 4:
            loads(hh + 2)
        k("s_nop 15\ns_nop 3\nv_mov_b32 v8, 0xff800000")
        for r in range(16):
            c = 8 * (r >> 2) + (r & 3)
            k(f"v_cmp_le_i32 vcc, {c}, v7\ns_nop 1\nv_cndmask_b32 v{16+r}, v8, v{16+r}, vcc")
        k("v_max_f32 v10, v32, v33\nv_max3_f32 v10, v10, v34, v35")
        for r in range(0, 16, 2):
            k(f"v_max3_f32 v10, v10, v{16+r}, v{17+r}")
        k("""
        v_mov_b32 v11, v10
        s_nop 1
        v_permlane32_swap_b32 v10, v11
        s_nop 1
        v_max_f32 v10, v10, v11
        v_mul_f32 v10, s12, v10
        """)
        for r in range(20):
            k(f"v_fma_f32 v{16+r}, v{16+r}, s12, -v10\nv_exp_f32 v{16+r}, v{16+r}")
        k("s_nop 0\nv_add_f32 v10, v16, v17")
        for r in range(2, 20):
            k(f"v_add_f32 v10, v10, v{16+r}")
        k("""
        v_mov_b32 v11, v10
        s_nop 1
        v_permlane32_swap_b32 v10, v11
        s_nop 1
        v_add_f32 v10, v10, v11
        v_rcp_f32 v10, v10
        s_nop 0
        """)
        for r in range(20):
            k(f"v_mul_f32 v{16+r}, v{16+r}, v10")
        for j in range(10):
            k(f"v_cvt_pk_bf16_f32 v{48+j}, v{16+2*j}, v{17+2*j}")
        k(f"""
        s_lshl_b32 s13, s3, 13
        v_add_u32 v10, s13, v9
        ds_write_b128 v10, v[48:51] offset:{hh*2048}
        ds_write_b128 v10, v[52:55] offset:{hh*2048+1024}
        s_lshl_b32 s13, s3, 11
        v_add_u32 v10, s13, v9
        ds_write_b64 v10, v[56:57] offset:{32768+(hh>>1)*1024+8*(hh&1)}
        """)
    k(f"""
    s_waitcnt lgkmcnt(0)
    s_barrier
    s_mul_i32 s6, s4, 458752
    s_add_u32 s6, s6, {L.VOX}
    s_mul_i32 s7, s4, 114688
    s_add_u32 s7, s7, {L.UM + layer * L.UMSZ}
    """)
    for i in range(4):
        k(f"s_add_u32 s{56+i}, s3, {4*i}")
    for ksx in range(40):
        k(f"ds_read_b128 a[{4*ksx}:{4*ksx+3}], v9 offset:{ksx*1024}")
        if ksx % 8 == 7: k("s_waitcnt lgkmcnt(0)")
    for i in range(4):
        k(f"s_min_u32 s{60+i}, s{56+i}, 13")
    groups = [(i, hf) for i in range(4) for hf in range(2)]
    def zload(gi):
        i, hf = groups[gi]
        B = 32 + 80 * (gi & 1)
        k(f"""
        s_lshl_b32 s8, s{60+i}, 11
        s_add_u32 s8, s8, s6
        s_lshl_b32 s9, s{60+i}, 10
        s_add_u32 s9, s9, s7
        """)
        for j in range(20):
            ksx = 20 * hf + j
            if ksx < 32:
                h, ksp = ksx >> 1, ksx & 1
                k(f"s_add_u32 s10, s8, {h*28672}\nbuffer_load_dwordx4 v[{B+4*j}:{B+4*j+3}], v5, s[44:47], s10 offen offset:{ksp*1024}{SC}")
            else:
                k(f"s_add_u32 s10, s9, {(ksx-32)*14336}\nbuffer_load_dwordx4 v[{B+4*j}:{B+4*j+3}], v5, s[44:47], s10 offen{SC}")
    zload(0); zload(1)
    for gi, (i, hf) in enumerate(groups):
        B = 32 + 80 * (gi & 1)
        A = 192 + 16 * i
        k(f"s_waitcnt vmcnt({20 if gi < 7 else 0})")
        for j in range(20):
            ksx = 20 * hf + j
            c = "0" if ksx == 0 else f"v[{A}:{A+15}]"
            k(f"v_mfma_f32_32x32x16_bf16 v[{A}:{A+15}], v[{B+4*j}:{B+4*j+3}], a[{4*ksx}:{4*ksx+3}], {c}")
        if gi + 2 < 8:
            zload(gi + 2)
    k("s_nop 15\ns_nop 3\nv_and_b32 v62, 63, v0")
    k(f"s_mul_i32 s8, s4, 28672\ns_add_u32 s8, s8, {L.X}")
    if layer == 1:
        k("s_mul_i32 s9, s4, 28672")
        epi(k, 4, 192, 56, 4, 44, 8, 52, 9, False, 16, dst_sc="")
    else:
        epi(k, 4, 192, 56, 4, 44, 8, 44, 8, True, 16)

def task_qkv(k):
    k(f"""
    s_lshl_b32 s15, s5, 2
    s_add_u32 s15, s15, s3
    s_mul_i32 s6, s4, 28672
    s_add_u32 s6, s6, {L.XN}
    s_mul_i32 s8, s15, 28672
    s_add_u32 s8, s8, {L.WAF}
    v_mov_b32 v6, v5
    """)
    for ks in range(28):
        if ks % 4 == 0 and ks:
            k("v_add_u32 v6, 4096, v6")
        k(f"buffer_load_dwordx4 v[{64+4*ks}:{67+4*ks}], v6, s[44:47], s8 offen offset:{(ks%4)*1024}")
        k(f"buffer_load_dwordx4 a[{4*ks}:{4*ks+3}], v6, s[44:47], s6 offen offset:{(ks%4)*1024}{SC}")
    lv, le = k.lab("v"), k.lab("e")
    k(f"s_cmp_ge_u32 s15, 32\ns_cbranch_scc1 {lv}\ns_waitcnt vmcnt(0)")
    for ks in range(28):
        c = "0" if ks == 0 else "v[16:31]"
        k(f"v_mfma_f32_32x32x16_bf16 v[16:31], v[{64+4*ks}:{67+4*ks}], a[{4*ks}:{4*ks+3}], {c}")
    k(f"""
    s_lshl_b32 s9, s4, 16
    s_lshl_b32 s10, s15, 11
    s_add_u32 s9, s9, s10
    s_add_u32 s9, s9, {L.QKA2}
    s_branch {le}
    """)
    k.label(lv)
    k("s_waitcnt vmcnt(0)")
    for ks in range(28):
        c = "0" if ks == 0 else "v[16:31]"
        k(f"v_mfma_f32_32x32x16_bf16 v[16:31], a[{4*ks}:{4*ks+3}], v[{64+4*ks}:{67+4*ks}], {c}")
    k(f"""
    s_lshl_b32 s9, s4, 15
    s_sub_u32 s10, s15, 32
    s_lshl_b32 s10, s10, 11
    s_add_u32 s9, s9, s10
    s_add_u32 s9, s9, {L.VA2}
    """)
    k.label(le)
    k("s_nop 15\ns_nop 3")
    for i in range(8):
        k(f"v_cvt_pk_bf16_f32 v{48+i}, v{16+2*i}, v{17+2*i}")
    k(f"""
    buffer_store_dwordx4 v[48:51], v5, s[44:47], s9 offen{SC}
    buffer_store_dwordx4 v[52:55], v5, s[44:47], s9 offen offset:1024{SC}
    """)

def task_attn(k):
    k(f"""
    s_lshl_b32 s15, s5, 2
    s_add_u32 s15, s15, s3
    s_lshl_b32 s6, s4, 16
    s_lshl_b32 s7, s15, 11
    s_add_u32 s6, s6, s7
    s_add_u32 s6, s6, {L.QKA2}
    buffer_load_dwordx4 v[8:11], v5, s[44:47], s6 offen{SC}
    buffer_load_dwordx4 v[12:15], v5, s[44:47], s6 offen offset:1024{SC}
    s_add_u32 s8, s6, 32768
    s_lshl_b32 s9, s4, 15
    s_add_u32 s9, s9, s7
    s_add_u32 s9, s9, {L.VA2}
    v_lshlrev_b32 v6, 2, v3
    v_sub_u32 v6, v2, v6
    v_mov_b32 v7, 0xff800000
    """)
    for i in range(9):
        l = k.lab("sk")
        back = 8 - i
        k(f"""
        s_cmp_lt_u32 s4, {back}
        s_cbranch_scc1 {l}
        s_sub_u32 s10, s8, {back*65536}
        s_sub_u32 s11, s9, {back*32768}
        buffer_load_dwordx4 a[{8*i}:{8*i+3}], v5, s[44:47], s10 offen{SC}
        buffer_load_dwordx4 a[{8*i+4}:{8*i+7}], v5, s[44:47], s10 offen offset:1024{SC}
        buffer_load_dwordx4 a[{72+8*i}:{72+8*i+3}], v5, s[44:47], s11 offen{SC}
        buffer_load_dwordx4 a[{72+8*i+4}:{72+8*i+7}], v5, s[44:47], s11 offen offset:1024{SC}
        """)
        k.label(l)
    for r in range(16):
        k(f"v_mov_b32 v{16+r}, 0")
    k("s_waitcnt vmcnt(0)")
    for i in range(9):
        l, l2 = k.lab("s"), k.lab("s2")
        back = 8 - i
        S = 64 + 16 * i
        k(f"""
        s_cmp_lt_u32 s4, {back}
        s_cbranch_scc1 {l}
        v_mfma_f32_32x32x16_bf16 v[{S}:{S+15}], a[{8*i}:{8*i+3}], v[8:11], 0
        v_mfma_f32_32x32x16_bf16 v[{S}:{S+15}], a[{8*i+4}:{8*i+7}], v[12:15], v[{S}:{S+15}]
        s_branch {l2}
        """)
        k.label(l)
        for r in range(16):
            k(f"v_mov_b32 v{S+r}, v7")
        k.label(l2)
    k("s_nop 15\ns_nop 3")
    for r in range(16):
        c = 8 * (r >> 2) + (r & 3)
        k(f"""
        v_cmp_le_i32 vcc, {c}, v6
        s_nop 1
        v_cndmask_b32 v{64+128+r}, v7, v{64+128+r}, vcc
        v_cndmask_b32 v{64+r}, v{64+r}, v7, vcc
        """)
    k("v_max_f32 v32, v64, v65")
    for r in range(2, 144, 2):
        k(f"v_max3_f32 v32, v32, v{64+r}, v{65+r}")
    c = 28 ** -0.5 * math.log2(math.e)
    k(f"""
    v_mov_b32 v33, v32
    s_nop 1
    v_permlane32_swap_b32 v32, v33
    s_nop 1
    v_max_f32 v32, v32, v33
    s_mov_b32 s12, {f32hex(c)}
    v_mul_f32 v33, s12, v32
    v_mov_b32 v34, 0
    """)
    for r in range(144):
        k(f"v_fma_f32 v{64+r}, v{64+r}, s12, -v33\nv_exp_f32 v{64+r}, v{64+r}")
    k("s_nop 0")
    for r in range(144):
        k(f"v_add_f32 v34, v34, v{64+r}")
    for r in range(72):
        k(f"v_cvt_pk_bf16_f32 v{64+r}, v{64+2*r}, v{65+2*r}")
    k("""
    v_mov_b32 v35, v34
    s_nop 1
    v_permlane32_swap_b32 v34, v35
    s_nop 1
    v_add_f32 v34, v34, v35
    v_rcp_f32 v34, v34
    """)
    for i in range(9):
        l = k.lab("p")
        back = 8 - i
        P = 64 + 8 * i
        k(f"""
        s_cmp_lt_u32 s4, {back}
        s_cbranch_scc1 {l}
        v_mfma_f32_32x32x16_bf16 v[16:31], a[{72+8*i}:{72+8*i+3}], v[{P}:{P+3}], v[16:31]
        v_mfma_f32_32x32x16_bf16 v[16:31], a[{72+8*i+4}:{72+8*i+7}], v[{P+4}:{P+7}], v[16:31]
        """)
        k.label(l)
    k("s_nop 15\ns_nop 3")
    for r in range(16):
        k(f"v_mul_f32 v{16+r}, v{16+r}, v34")
    for i in range(8):
        k(f"v_cvt_pk_bf16_f32 v{40+i}, v{16+2*i}, v{17+2*i}")
    k(f"""
    s_lshl_b32 s9, s4, 15
    s_add_u32 s9, s9, s7
    s_add_u32 s9, s9, {L.OA2}
    buffer_store_dwordx4 v[40:43], v5, s[44:47], s9 offen{SC}
    buffer_store_dwordx4 v[44:47], v5, s[44:47], s9 offen offset:1024{SC}
    """)

def task_oproj(k):
    k(f"""
    s_lshl_b32 s6, s4, 15
    s_add_u32 s6, s6, {L.OA2}
    v_mov_b32 v6, v5
    """)
    for ks in range(32):
        if ks % 4 == 0 and ks:
            k("v_add_u32 v6, 4096, v6")
        k(f"buffer_load_dwordx4 a[{4*ks}:{4*ks+3}], v6, s[44:47], s6 offen offset:{(ks%4)*1024}{SC}")
    for i in range(4):
        k(f"s_add_u32 s{56+i}, s3, {4*i}\ns_min_u32 s{60+i}, s{56+i}, 13")
    def wreg(i, ks):
        return f"v[{128+4*ks}:{131+4*ks}]" if i % 2 == 0 else f"a[{128+4*ks}:{131+4*ks}]"
    def wload(i):
        k(f"s_lshl_b32 s7, s{60+i}, 15\ns_add_u32 s7, s7, {L.WOAF}\nv_mov_b32 v6, v5")
        for ks in range(32):
            if ks % 4 == 0 and ks:
                k("v_add_u32 v6, 4096, v6")
            k(f"buffer_load_dwordx4 {wreg(i,ks)}, v6, s[44:47], s7 offen offset:{(ks%4)*1024}")
    wload(0); wload(1)
    for i in range(4):
        k(f"s_waitcnt vmcnt({32 if i < 3 else 0})")
        for ks in range(32):
            c = "0" if ks == 0 else f"v[{64+16*i}:{79+16*i}]"
            k(f"v_mfma_f32_32x32x16_bf16 v[{64+16*i}:{79+16*i}], {wreg(i,ks)}, a[{4*ks}:{4*ks+3}], {c}")
        if i + 2 < 4:
            wload(i + 2)
    k("s_nop 15\ns_nop 3")
    k(f"s_mul_i32 s8, s4, 28672\ns_add_u32 s8, s8, {L.X}")
    epi(k, 4, 64, 56, 4, 44, 8, 44, 8, True, 128)

def task_kb1(k):
    NB = 4
    k(f"""
    s_mul_i32 s16, s5, 15
    s_lshl_b32 s6, s4, 2
    s_add_u32 s6, s6, s3           ; rt
    s_mul_i32 s7, s6, 28672
    s_add_u32 s7, s7, {L.XN}
    s_mul_i32 s15, s3, 7168
    s_mul_i32 s9, s16, 28672
    s_add_u32 s9, s9, s15
    s_add_u32 s9, s9, {L.WTF}
    s_mov_b32 s10, s15
    """)
    def dma():
        k(f"""
        s_mov_b32 m0, s10
        s_add_u32 s11, s9, 4096
        s_add_u32 s17, s10, 4096
        """)
        for i in range(4):
            k(f"buffer_load_dwordx4 v5, s[44:47], s9 offen offset:{i*1024} lds")
        k("s_mov_b32 m0, s17\ns_nop 0")
        for i in range(3):
            k(f"buffer_load_dwordx4 v5, s[44:47], s11 offen offset:{i*1024} lds")
        l = k.lab("dw")
        k(f"""
        s_add_u32 s9, s9, 28672
        s_add_u32 s10, s10, 28672
        s_cmp_lt_u32 s10, {NB*28672}
        s_cbranch_scc1 {l}
        s_sub_u32 s10, s10, {NB*28672}
        """)
        k.label(l)
    for b in range(3):
        dma()
    k("v_mov_b32 v4, v5")
    for ks in range(28):
        if ks % 4 == 0 and ks:
            k("v_add_u32 v4, 4096, v4")
        k(f"buffer_load_dwordx4 a[{4*ks}:{4*ks+3}], v4, s[44:47], s7 offen offset:{(ks%4)*1024}{SC}")
    lloop, lv, le, lnd, lw0, lw1 = [k.lab(x) for x in ("kl", "v", "e", "nd", "w0", "w1")]
    k(f"""
    s_mov_b32 s18, 0               ; it
    s_mov_b32 s19, 0
    s_waitcnt vmcnt(0)
    """)
    k.label(lloop)
    k(f"""
    s_cmp_ge_u32 s18, 13
    s_cbranch_scc1 {lw0}
    s_waitcnt vmcnt(20)
    s_branch {lw1}
    """)
    k.label(lw0)
    k("s_waitcnt vmcnt(2)")
    k.label(lw1)
    k(f"""
    s_barrier
    s_cmp_ge_u32 s18, 12
    s_cbranch_scc1 {lnd}
    """)
    dma()
    k.label(lnd)
    k(f"""
    s_add_u32 s12, s16, s18
    v_add_u32 v6, s19, v5
    s_cmp_ge_u32 s12, 256
    s_cbranch_scc1 {lv}
    """)
    for form in (0, 1):
        if form == 1:
            k.label(lv)
        PF = 4
        for ks in range(PF):
            k(f"ds_read_b128 v[{64+4*ks}:{67+4*ks}], v6 offset:{ks*1024}")
        for ks in range(28):
            rem = min(PF - 1, 27 - ks)
            k(f"s_waitcnt lgkmcnt({rem})")
            B = 64 + 4 * (ks % (PF + 1))
            c = "0" if ks == 0 else "v[16:31]"
            A = f"a[{4*ks}:{4*ks+3}]"
            Bv = f"v[{B}:{B+3}]"
            if form == 0:
                k(f"v_mfma_f32_32x32x16_bf16 v[16:31], {Bv}, {A}, {c}")
            else:
                k(f"v_mfma_f32_32x32x16_bf16 v[16:31], {A}, {Bv}, {c}")
            if ks + PF < 28:
                Bn = 64 + 4 * ((ks + PF) % (PF + 1))
                k(f"ds_read_b128 v[{Bn}:{Bn+3}], v6 offset:{(ks+PF)*1024}")
        if form == 0:
            k(f"""
            s_lshl_b32 s13, s6, 19
            s_lshl_b32 s14, s12, 11
            s_add_u32 s13, s13, s14
            s_add_u32 s13, s13, {L.QKB}
            s_branch {le}
            """)
        else:
            k(f"""
            s_mul_i32 s13, s6, 458752
            s_sub_u32 s14, s12, 256
            s_lshl_b32 s14, s14, 11
            s_add_u32 s13, s13, s14
            s_add_u32 s13, s13, {L.VOX}
            """)
    k.label(le)
    k("s_nop 7")
    for i in range(8):
        k(f"v_cvt_pk_bf16_f32 v{96+i}, v{16+2*i}, v{17+2*i}")
    l = k.lab("bw")
    k(f"""
    buffer_store_dwordx4 v[96:99], v5, s[44:47], s13 offen{SC}
    buffer_store_dwordx4 v[100:103], v5, s[44:47], s13 offen offset:1024{SC}
    s_add_u32 s19, s19, 28672
    s_cmp_lt_u32 s19, {NB*28672}
    s_cbranch_scc1 {l}
    s_mov_b32 s19, 0
    """)
    k.label(l)
    k(f"""
    s_add_u32 s18, s18, 1
    s_cmp_lt_u32 s18, 15
    s_cbranch_scc1 {lloop}
    """)
```

```python
S, D = 2048, 448
TILE = 28672
def al(x, a=4096): return (x + a - 1) // a * a
off = 0
def alloc(n):
    global off
    o = off
    off = al(off + n)
    return o
XFSZ = S * D * 2
XF   = alloc(4 * XFSZ)
STSZ = 64 * 14 * 256
ST   = alloc(4 * STSZ)
WTF  = alloc(480 * TILE)
WOF  = alloc(16 * 14 * 16 * 1024)
WAF  = alloc(48 * TILE)
WOAF = alloc(14 * 32 * 1024)
QKASZ = 64 * 2 * 16 * 2048
VASZ = 64 * 16 * 2048
QKA  = alloc(2 * QKASZ)
VA   = alloc(2 * VASZ)
OA   = alloc(2 * VASZ)
QKBSZ = 64 * 256 * 2048
VOXSZ = 64 * 224 * 2048
QKB  = alloc(2 * QKBSZ)
VOX  = alloc(2 * VOXSZ + 4096)
KMSZ = 64 * 65536
UMSZ = 64 * 8 * 14 * 1024
KM   = alloc(2 * KMSZ)
UM   = alloc(2 * UMSZ)
PGSZ = 64 * 40960
PG   = alloc(2 * PGSZ)
MBOX = alloc(2 * 64 * 8192)
PBOX = alloc(2 * 64 * 10240)
FLAGS = alloc(8 * 2 * 64 * 256)
BOXEND = off
def FL(stage): return FLAGS + stage * 32768
F_XR, F_D2, F_D3, F_D3B, F_D4, F_C, F_DS = range(7)
WS_BYTES = 268435456
assert off + (1 << 20) <= WS_BYTES
```

```python
import sys
sys.path.insert(0, 'gen')
from asm import *
import layout as L
import k_prep, k_mega
NAME = "interleave_layers__sliding_block__memory_aug_recurrent_mem_tr__prompt"
def build(order, kerns, path):
    hdr = []
    for (kn, (g, b, lds)) in order:
        hdr.append(f"; @launch kernel={kn} grid=({g},1,1) block=({b},1,1) lds={lds}")
    body = ['.amdgcn_target "amdgcn-amd-amdhsa--gfx950"']
    descs = []
    for k, opts in kerns:
        t, d = k.text(**opts)
        body.append(t); descs.append(d)
    open(path, 'w').write('\n'.join(hdr) + '\n' + '\n'.join(body) + '\n'.join(descs))
if __name__ == '__main__':
    import os
    if os.environ.get('DIAG'): k_mega.DIAG = True
    OUT = os.environ.get('OUT', f'cdna_kernels/{NAME}.s')
    kerns = []; order = []
    def add(gen, *a, launch=True):
        k, l, o = gen(*a)
        kerns.append((k, o))
        if launch: order.append((k.name, l))
        return (k.name, l)
    add(k_prep.gen_prep)
    add(k_prep.gen_vo)
    add(k_mega.gen_mega)
    build(order, kerns, OUT)
```
